```python
import torch

def _softmax(x, axis=-1):
    return torch.softmax(x, dim=axis)

def _gelu(x):
    return torch.nn.functional.gelu(x, approximate='tanh')

def _silu(x):
    return torch.nn.functional.silu(x)

def _sigmoid(x):
    return torch.sigmoid(x)

def _layernorm(x, axis=-1, eps=1e-05):
    m = x.mean(dim=axis, keepdim=True)
    v = x.var(dim=axis, keepdim=True, unbiased=False)
    return (x - m) / torch.sqrt(v + eps)

def _scatter_add(tgt, idx, src, axis=0):
    return tgt.clone().index_add_(axis, idx, src)

def _segment_sum(src, seg, n):
    out = torch.zeros((n,) + src.shape[1:], dtype=src.dtype)
    return out.index_add_(0, seg, src)

def _pad(x, pw):
    flat = tuple((v for pair in reversed(pw) for v in pair))
    return torch.nn.functional.pad(x, flat)
kernel_name = 'adaLN_cond__mha_block_cached__geglu_ffn__decode'

def setup_inputs():

    _w = lambda a: (lambda t: t.to(torch.bfloat16) if t.is_floating_point() else t)(torch.as_tensor(a))

    def _A_setup():
        B, Sq, D = (2, 1, 448)
        H, Sk, Dh = (16, 4096, 256)
        return {'x': _w((lambda *s: torch.randn(*s, dtype=torch.bfloat16) * 0.1)(B, Sq, D)), 'k_cache': _w((lambda *s: torch.randn(*s, dtype=torch.bfloat16) * 0.8)(B, H, Sk, Dh)), 'v_cache': _w((lambda *s: torch.randn(*s, dtype=torch.bfloat16) * 0.8)(B, H, Sk, Dh)), 'wq': _w((lambda *s: torch.randn(*s, dtype=torch.bfloat16) * 0.8)(D, H * Dh) * D ** (-0.5)), 'wo': _w((lambda *s: torch.randn(*s, dtype=torch.bfloat16) * 0.8)(H * Dh, D) * (H * Dh) ** (-0.5))}
    _A_in = _A_setup()

    def _B_setup():
        B, S, D, F = (2, 1, 448, 1792)
        return {'x': _w((lambda *s: torch.randn(*s, dtype=torch.bfloat16) * 0.1)(B, S, D)), 'w_gate': _w((lambda *s: torch.randn(*s, dtype=torch.bfloat16) * 0.1)(D, F)), 'w_up': _w((lambda *s: torch.randn(*s, dtype=torch.bfloat16) * 0.1)(D, F)), 'w_down': _w((lambda *s: torch.randn(*s, dtype=torch.bfloat16) * 0.1)(F, D))}
    _B_in = _B_setup()
    return {'A_x': _A_in['x'], 'A_k_cache': _A_in['k_cache'], 'A_v_cache': _A_in['v_cache'], 'A_wq': _A_in['wq'], 'A_wo': _A_in['wo'], 'B_x': _B_in['x'], 'B_w_gate': _B_in['w_gate'], 'B_w_up': _B_in['w_up'], 'B_w_down': _B_in['w_down'], 'c': _w((lambda *s: torch.randn(*s, dtype=torch.bfloat16) * 0.8)(2, 448) * 8.0), 'w_mod': _w((lambda *s: torch.randn(*s, dtype=torch.bfloat16) * 0.8)(448, 6 * 448) * 448 ** (-0.5) * 8.0)}

def reference(A_x, A_k_cache, A_v_cache, A_wq, A_wo, B_x, B_w_gate, B_w_up, B_w_down, c, w_mod):

    def _A_ref(x, k_cache, v_cache, wq, wo):
        B, Sq, D = x.shape
        H, Dh = (16, 256)
        q = (lambda x, *d: x.permute(*d))((x @ wq).reshape(B, Sq, H, Dh), 0, 2, 1, 3)
        scores = torch.einsum('bhqd,bhkd->bhqk', q, k_cache) * Dh ** (-0.5)
        p = _softmax(scores, axis=-1)
        o = torch.einsum('bhqk,bhkd->bhqd', p, v_cache)
        return (lambda x, *d: x.permute(*d))(o, 0, 2, 1, 3).reshape(B, Sq, H * Dh) @ wo

    def _B_ref(x, w_gate, w_up, w_down):
        return _gelu(x @ w_gate) * (x @ w_up) @ w_down
    x = A_x
    mod = (_silu(c) @ w_mod).reshape(c.shape[0], 6, 1, -1)
    sa, ca, ga, sb, cb, gb = (mod[:, 0].clone(), mod[:, 1].clone(), mod[:, 2].clone(), mod[:, 3].clone(), mod[:, 4].clone(), mod[:, 5].clone())
    h = _layernorm(x, axis=-1) * (1 + ca) + sa
    x = x + ga * _A_ref(h, A_k_cache, A_v_cache, A_wq, A_wo)
    h = _layernorm(x, axis=-1) * (1 + cb) + sb
    x = x + gb * _B_ref(h, B_w_gate, B_w_up, B_w_down)
    return x
```

```python
import re

TRANS = ("v_exp_f32", "v_log_f32", "v_rcp_f32", "v_rsq_f32", "v_sqrt_f32", "v_sin_f32", "v_cos_f32")


def _regs(tok):
    tok = tok.strip()
    out = set()
    m = re.fullmatch(r"(-|abs\()?\s*([vs])\[(\d+):(\d+)\]\)?", tok)
    if m:
        for i in range(int(m.group(3)), int(m.group(4)) + 1):
            out.add((m.group(2), i))
        return out
    m = re.fullmatch(r"(-|abs\()?\s*([vs])(\d+)\)?", tok)
    if m:
        out.add((m.group(2), int(m.group(3))))
        return out
    if tok in ("vcc", "vcc_lo", "vcc_hi"):
        out.add(("vcc", 0))
    if tok in ("exec",):
        out.add(("exec", 0))
    return out


class Asm:
    def __init__(self):
        self.lines = []
        self.hist = []
        self.nlab = 0

    def raw(self, s):
        self.lines.append(s)

    def comment(self, s):
        self.lines.append("  ; " + s)

    def label(self, name):
        self.lines.append("  s_nop 4")
        self.hist = []
        self.lines.append(name + ":")

    def newlabel(self, base="L"):
        self.nlab += 1
        return f"{base}_{self.nlab}"

    def nop(self, n):
        while n > 0:
            k = min(n, 8)
            self.lines.append(f"  s_nop {k-1}")
            for _ in range(k):
                self.hist.append(dict(kind="nop", wv=set(), ws=set(), store=set()))
            n -= k

    def __call__(self, text):
        text = text.strip()
        op, _, rest = text.partition(" ")
        toks = [t.strip() for t in rest.split(",")]
        ops = []
        for t in toks:
            if not t:
                continue
            first = t.split(" ")[0] if not t.startswith("abs(") else t.split(" ")[0]
            ops.append(first)
        mo = re.search(r"offset:(-?\d+)", rest)
        if mo:
            ov = int(mo.group(1))
            if op.startswith("buffer_"): assert 0 <= ov <= 4095, text
            if op.startswith("global_"): assert -4096 <= ov <= 4095, text
            if op.startswith("ds_"): assert 0 <= ov <= 65535, text
        is_valu = op.startswith("v_")
        is_dpp = "_dpp" in op or "dpp" in rest.split() or "quad_perm" in rest or "row_" in rest
        is_trans = op in TRANS or op.replace("_e32", "") in TRANS
        is_perm = op.startswith("v_permlane")
        is_rdl = op.startswith("v_readlane") or op.startswith("v_readfirstlane")
        is_vmem = op.startswith(("buffer_", "global_", "flat_"))
        is_ds = op.startswith("ds_")
        is_store = is_vmem and ("store" in op or "atomic" in op)
        wv, ws_, rv, rs = set(), set(), set(), set()
        if is_valu:
            if op.startswith("v_cmp"):
                d = _regs(ops[0]); srcs = ops[1:]
            elif is_perm:
                d = _regs(ops[0]) | _regs(ops[1]); srcs = ops[0:2]
            elif op.startswith("v_add_co") or op.startswith("v_addc_co") or op.startswith("v_sub_co"):
                d = _regs(ops[0]) | _regs(ops[1]); srcs = ops[2:]
            else:
                d = _regs(ops[0]); srcs = ops[1:]
                if op.startswith(("v_fmac", "v_dot2c")):
                    srcs = ops
            for r in d:
                (wv if r[0] == "v" else ws_).add(r)
            for s in srcs:
                for r in _regs(s):
                    (rv if r[0] == "v" else rs).add(r)
            if op.startswith("v_cndmask") and len(ops) == 3:
                rs.add(("vcc", 0))
        elif is_vmem or is_ds:
            for s in ops:
                for r in _regs(s):
                    (rv if r[0] == "v" else rs).add(r)
        need = 0
        n = len(self.hist)
        for idx in range(max(0, n - 6), n):
            h = self.hist[idx]
            dist = n - 1 - idx
            if h["kind"] == "valu":
                if is_valu and (is_dpp or is_perm) and (h["wv"] & rv):
                    need = max(need, 2 - dist)
                if is_valu and h.get("trans") and not is_trans and (h["wv"] & (rv | wv)):
                    need = max(need, 1 - dist)
                if is_rdl and (h["wv"] & rv):
                    need = max(need, 1 - dist)
                if is_valu and (h["ws"] & rs):
                    need = max(need, (4 if is_rdl else 2) - dist)
                if is_vmem and (h["ws"] & rs):
                    need = max(need, 5 - dist)
                if (not is_valu) and (not is_vmem) and (not is_ds) and h["ws"]:
                    allr = set()
                    for s in ops:
                        allr |= _regs(s)
                    if h["ws"] & allr:
                        need = max(need, 1 - dist)
            if h["store"] and is_valu and (h["store"] & wv):
                need = max(need, 2 - dist)
        if need > 0:
            self.nop(need)
        self.lines.append("  " + text)
        rec = dict(kind="valu" if is_valu else "other", wv=wv, ws=ws_, trans=is_trans, store=set())
        if is_store and ("x4" in op or "x3" in op):
            st = set()
            for s in ops:
                st |= {r for r in _regs(s) if r[0] == "v"}
            rec["store"] = st
        self.hist.append(rec)
        if len(self.hist) > 16:
            self.hist = self.hist[-16:]

    def text(self):
        return "\n".join(self.lines) + "\n"
```

```python
import struct, sys
from asmlib import Asm

NAME = "adaLN_cond__mha_block_cached__geglu_ffn__decode_kernel"
NT = "nt"
NSVC = 32
NWG = 256

def f32(x):
    return "0x%08x" % struct.unpack("<I", struct.pack("<f", x))[0]

LOG2E = 1.4426950408889634

WS_MOD = 0x0
WS_Q = 0x8000
WS_PO = 0x10000
WS_PML = 0x48000
WS_Y = 0x50000
WS_Z = 0x58000
C_A = 0
C_Q = 4
C_P = 4 * 17
C_Y = 4 * 25
C_Z = 4 * 26
C_A2 = 4 * 27

P_X, P_K, P_V, P_WQ, P_WO, P_BX, P_WG, P_WU, P_WD, P_C, P_WM, P_OUT, P_DBG, P_WS = [16 + 2 * i for i in range(14)]
def sp(p): return f"s[{p}:{p+1}]"

a = Asm()
I = a

def srd(dst, ptr, nbytes):
    I(f"s_mov_b32 s{dst}, s{ptr}")
    I(f"s_and_b32 s{dst+1}, s{ptr+1}, 0xffff")
    I(f"s_mov_b32 s{dst+2}, {nbytes}")
    I(f"s_mov_b32 s{dst+3}, 0x20000")

def bf16r(v, t=None):
    I(f"v_cvt_pk_bf16_f32 v{v}, v{v}, v{v}")
    I(f"v_lshlrev_b32 v{v}, 16, v{v}")

def poll(off, target, vt, st, lab):
    L = a.newlabel(lab); D = a.newlabel(lab + "d")
    I(f"v_mov_b32 v{vt}, 0")
    I("s_mov_b32 s90, 0")
    a.label(L)
    I(f"global_load_dword v{vt+1}, v{vt}, {sp(P_DBG)} offset:{off} sc1")
    I("s_waitcnt vmcnt(0)")
    I(f"v_readfirstlane_b32 s{st}, v{vt+1}")
    I(f"s_cmp_ge_u32 s{st}, {target}")
    I(f"s_cbranch_scc1 {D}")
    I("s_add_u32 s90, s90, 1")
    I("s_cmp_ge_u32 s90, 100000")
    I(f"s_cbranch_scc1 {D}")
    I("s_sleep 1")
    I(f"s_branch {L}")
    a.label(D)

def signal(off, vt):
    I(f"v_mov_b32 v{vt}, 0")
    I(f"v_mov_b32 v{vt+1}, 1")
    I("s_mov_b64 exec, 1")
    I(f"global_atomic_add v{vt}, v{vt+1}, {sp(P_DBG)} offset:{off} sc1")
    I("s_mov_b64 exec, -1")

def allreduce16(regs, op="v_add_f32"):
    for perm in ("quad_perm:[1,0,3,2]", "quad_perm:[2,3,0,1]", "row_half_mirror", "row_mirror"):
        for r in regs:
            I(f"{op}_dpp v{r}, v{r}, v{r} {perm} row_mask:0xf bank_mask:0xf")

def allreduce_swap(regs, temps, which, op="v_add_f32"):
    for r, t in zip(regs, temps):
        I(f"v_mov_b32 v{t}, v{r}")
    for r, t in zip(regs, temps):
        I(f"v_permlane{which}_swap_b32 v{r}, v{t}")
    for r, t in zip(regs, temps):
        I(f"{op} v{r}, v{r}, v{t}")

def treduce(regs, bit):
    n = len(regs) // 2
    lo, hi = regs[:n], regs[n:]
    if bit in (5, 4):
        w = 32 if bit == 5 else 16
        for x, y in zip(lo, hi):
            I(f"v_permlane{w}_swap_b32 v{x}, v{y}")
        for x, y in zip(lo, hi):
            I(f"v_add_f32 v{x}, v{x}, v{y}")
    elif bit == 3:
        for x, y in zip(lo, hi):
            I(f"v_add_f32_dpp v{x}, v{x}, v{x} row_ror:8 row_mask:0xf bank_mask:0x3")
        for x, y in zip(lo, hi):
            I(f"v_add_f32_dpp v{x}, v{y}, v{y} row_ror:8 row_mask:0xf bank_mask:0xc")
    elif bit == 2:
        for x, y in zip(lo, hi):
            I(f"v_add_f32_dpp v{x}, v{x}, v{x} row_shl:4 row_mask:0xf bank_mask:0x5")
        for x, y in zip(lo, hi):
            I(f"v_add_f32_dpp v{x}, v{y}, v{y} row_shr:4 row_mask:0xf bank_mask:0xa")
    return lo

a.raw(f"; @launch grid=({NWG},1,1) block=(1024,1,1) lds=65536")
a.raw('.amdgcn_target "amdgcn-amd-amdhsa--gfx950"')
a.raw(".text"); a.raw(f".globl {NAME}"); a.raw(".p2align 8"); a.raw(f".type {NAME},@function"); a.raw(f"{NAME}:")
I(f"s_cmp_ge_u32 s2, {NWG}")
I("s_cbranch_scc1 L_end")
I("s_load_dwordx16 s[16:31], s[0:1], 0")
I("s_load_dwordx8 s[32:39], s[0:1], 64")
I("s_load_dwordx4 s[40:43], s[0:1], 96")
I("v_lshrrev_b32 v1, 6, v0")
I("v_and_b32 v2, 63, v0")
I("v_readfirstlane_b32 s3, v1")
I("s_waitcnt lgkmcnt(0)")
I(f"s_cmp_lt_u32 s2, {NSVC}")
I("s_cbranch_scc1 L_service")

NS = 20
NVP = 7
KB = 8
VB = 88
T0 = 116
ACC = 120
QR = 4
I(f"s_sub_u32 s4, s2, {NSVC}")
I("s_mul_i32 s5, s4, 9363"); I("s_lshr_b32 s5, s5, 16")
I("s_mul_i32 s6, s5, 7"); I("s_sub_u32 s6, s4, s6")
I("s_cmp_eq_u32 s3, 15")
I("s_cbranch_scc1 L_ctrl")
srd(44, P_K, 0x4000000)
srd(48, P_V, 0x4000000)
I("s_mul_i32 s7, s6, 15"); I("s_add_u32 s7, s7, s3")
I("s_lshl_b32 s8, s7, 11")
I(f"s_mov_b32 s9, {(2**32 + 104)//105}")
I("s_mul_hi_u32 s10, s8, s9")
I("s_add_u32 s8, s8, 2048"); I("s_mul_hi_u32 s11, s8, s9")
I("s_sub_u32 s11, s11, s10")
I("s_lshl_b32 s12, s5, 21"); I("s_lshl_b32 s13, s10, 10"); I("s_add_u32 s12, s12, s13")
I("v_lshlrev_b32 v3, 4, v2"); I("v_add_u32 v1, s12, v3")
I("s_mov_b32 s60, 4096"); I("s_mov_b32 s61, 8192"); I("s_mov_b32 s62, 12288"); I("s_mov_b32 s63, 16384")
I("s_mov_b32 s64, 0x40000000"); I("s_mov_b32 s65, 0xff800000")
I("s_cmp_eq_u32 s11, 20"); I("s_cselect_b32 s64, s63, s64"); I("s_cselect_b32 s65, 0, s65")
so = {0: "0", 1: "s60", 2: "s61", 3: "s62", 4: "s63"}
issued = []
def sload(kind, i, reg):
    s = so[i // 4] if i != NS - 1 else "s64"
    r = 44 if kind == "K" else 48
    I(f"buffer_load_dwordx4 v[{reg}:{reg+3}], v1, s[{r}:{r+3}], {s} offen offset:{(i%4)*1024} {NT}")
    issued.append((kind, i))
def swait(kind, i):
    idx = issued.index((kind, i))
    I(f"s_waitcnt vmcnt({len(issued) - 1 - idx})")
vreg = {}
for i in range(NS): sload("K", i, KB + 4 * i)
for i in range(NVP):
    vreg[i] = VB + 4 * i
    sload("V", i, vreg[i])
I("s_barrier")
I("v_and_b32 v3, 31, v2"); I("v_lshlrev_b32 v3, 4, v3")
I(f"ds_read_b128 v[{QR}:{QR+3}], v3")
I("s_waitcnt lgkmcnt(0)")
nextv = NVP
for g0 in range(0, NS, 4):
    grp = list(range(g0, g0 + 4))
    swait("K", grp[-1])
    if g0 == 0:
        for r in range(4):
            I(f"v_dot2_f32_bf16 v{KB}, v{KB+r}, v{QR+r}, " + ("0" if r == 0 else f"v{KB}"))
    for r in range(4):
        for s in grp:
            if s == 0: continue
            d = KB + s
            src2 = "0" if r == 0 else f"v{d}"
            I(f"v_dot2_f32_bf16 v{d}, v{KB+4*s+r}, v{QR+r}, {src2}")
    for s in grp:
        if s >= 5 and nextv < NS:
            vreg[nextv] = KB + 4 * s
            sload("V", nextv, vreg[nextv]); nextv += 1
    ds = [KB + s for s in grp]
    allreduce16(ds)
    allreduce_swap(ds, [T0 + k for k in range(4)], 16)
    for d in ds:
        I(f"v_cvt_pk_bf16_f32 v{d}, v{d}, v{d}")
    for d in ds:
        I(f"v_lshlrev_b32 v{d}, 16, v{d}")
    for d in ds:
        I(f"v_mul_f32 v{d}, {f32(0.0625 * LOG2E)}, v{d}")
assert nextv == NS
I(f"v_add_f32 v{KB+NS-1}, s65, v{KB+NS-1}")
M_, L_ = 4, 5
I(f"v_max3_f32 v{M_}, v{KB}, v{KB+1}, v{KB+2}")
for s in range(3, NS - 1, 2):
    I(f"v_max3_f32 v{M_}, v{M_}, v{KB+s}, v{KB+s+1}")
I(f"v_max_f32 v{M_}, v{M_}, v{KB+NS-1}")
for s in range(NS):
    I(f"v_sub_f32 v{KB+s}, v{KB+s}, v{M_}")
for s in range(NS):
    I(f"v_exp_f32 v{KB+s}, v{KB+s}")
I(f"v_add_f32 v{L_}, v{KB}, v{KB+1}")
for s in range(2, NS):
    I(f"v_add_f32 v{L_}, v{L_}, v{KB+s}")
for s in range(NS):
    I(f"v_cvt_pk_bf16_f32 v{KB+s}, v{KB+s}, 0")
for j in range(8):
    I(f"v_mov_b32 v{ACC+j}, 0")
for s in range(NS):
    swait("V", s)
    t = T0 + (s & 1)
    I(f"v_lshlrev_b32 v{t}, 16, v{KB+s}")
    for r in range(4):
        I(f"v_dot2_f32_bf16 v{ACC+2*r}, v{vreg[s]+r}, v{KB+s}, v{ACC+2*r}")
        I(f"v_dot2_f32_bf16 v{ACC+2*r+1}, v{vreg[s]+r}, v{t}, v{ACC+2*r+1}")
LDS_O = 1024; LDS_ML = 32768
I("v_lshrrev_b32 v6, 5, v2")
I("s_lshl_b32 s7, s3, 1")
I("v_add_u32 v6, s7, v6")
I("v_lshlrev_b32 v7, 10, v6")
I("v_and_b32 v3, 31, v2"); I("v_lshlrev_b32 v8, 5, v3"); I("v_add_u32 v7, v7, v8")
I(f"ds_write_b128 v7, v[{ACC}:{ACC+3}] offset:{LDS_O}")
I(f"ds_write_b128 v7, v[{ACC+4}:{ACC+7}] offset:{LDS_O+16}")
I("v_lshlrev_b32 v6, 3, v6")
I("v_cmp_eq_u32 vcc, 0, v3")
I("s_and_saveexec_b64 s[8:9], vcc")
I(f"ds_write_b64 v6, v[{M_}:{M_+1}] offset:{LDS_ML}")
I("s_mov_b64 exec, s[8:9]")
I("s_waitcnt lgkmcnt(0)")
a.label("L_b2")
I("s_barrier")
I("s_cmp_ge_u32 s3, 4")
I("s_cbranch_scc1 L_end")
I("v_mov_b32 v1, 0")
for k in range(15):
    I(f"ds_read_b128 v[{8+4*k}:{11+4*k}], v1 offset:{LDS_ML+16*k}")
I("v_lshlrev_b32 v2, 2, v0")
for k in range(30):
    I(f"ds_read_b32 v{70+k}, v2 offset:{LDS_O+1024*k}")
I("s_waitcnt lgkmcnt(0)")
ms = [8 + 2 * k for k in range(30)]
I(f"v_max3_f32 v4, v{ms[0]}, v{ms[1]}, v{ms[2]}")
for k in range(3, 29, 2):
    I(f"v_max3_f32 v4, v4, v{ms[k]}, v{ms[k+1]}")
I(f"v_max_f32 v4, v4, v{ms[29]}")
for k in range(30):
    I(f"v_sub_f32 v{ms[k]}, v{ms[k]}, v4")
for k in range(30):
    I(f"v_exp_f32 v{ms[k]}, v{ms[k]}")
I("v_mov_b32 v5, 0"); I("v_mov_b32 v6, 0")
for k in range(30):
    I(f"v_fmac_f32 v5, v{ms[k]}, v{ms[k]+1}")
    I(f"v_fmac_f32 v6, v{ms[k]}, v{70+k}")
I("s_lshl_b32 s7, s4, 10")
I("v_add_u32 v2, s7, v2")
I(f"v_add_u32 v2, {WS_PO}, v2")
I(f"global_store_dword v2, v6, {sp(P_WS)} sc1")
I("s_lshl_b32 s7, s4, 3")
I(f"s_add_u32 s7, s7, {WS_PML}")
I("v_mov_b32 v3, s7")
I("v_cmp_eq_u32 vcc, 0, v0")
I("s_and_saveexec_b64 s[8:9], vcc")
I(f"global_store_dwordx2 v3, v[4:5], {sp(P_WS)} sc1")
I("s_mov_b64 exec, s[8:9]")
I("s_waitcnt vmcnt(0)")
I("s_barrier")
I("s_cmp_lg_u32 s3, 0")
I("s_cbranch_scc1 L_end")
I("s_and_b32 s7, s5, 15"); I("s_lshr_b32 s7, s7, 1"); I("s_lshl_b32 s7, s7, 2")
I("v_mov_b32 v1, s7"); I("v_mov_b32 v2, 1")
I("s_mov_b64 exec, 1")
I(f"global_atomic_add v1, v2, {sp(P_DBG)} offset:{C_P} sc1")
I("s_endpgm")

a.label("L_ctrl")
I("s_and_b32 s7, s5, 15"); I("s_lshl_b32 s7, s7, 2")
I("v_mov_b32 v3, s7")
I("s_mov_b32 s90, 0")
a.label("L_cpoll")
I(f"global_load_dword v4, v3, {sp(P_DBG)} offset:{C_Q} sc1")
I("s_waitcnt vmcnt(0)")
I("v_readfirstlane_b32 s8, v4")
I("s_cmp_ge_u32 s8, 2")
I("s_cbranch_scc1 L_cdone")
I("s_add_u32 s90, s90, 1")
I("s_cmp_ge_u32 s90, 100000")
I("s_cbranch_scc1 L_cdone")
I("s_sleep 2")
I("s_branch L_cpoll")
a.label("L_cdone")
I("s_lshl_b32 s7, s5, 9")
I(f"s_add_u32 s7, s7, {WS_Q}")
I("v_and_b32 v3, 31, v2"); I("v_lshlrev_b32 v3, 4, v3")
I("v_add_u32 v5, s7, v3")
I(f"global_load_dwordx4 v[8:11], v5, {sp(P_WS)} sc1")
I("s_waitcnt vmcnt(0)")
I("ds_write_b128 v3, v[8:11]")
I("s_waitcnt lgkmcnt(0)")
I("s_barrier")
I("s_branch L_b2")

a.label("L_service")
LDS_A = 0
LDS_X2 = 4096
LDS_A2 = 7680
LDS_RED = 8192
V_AADDR, V_X, V_LN, V_SILU, V_K4, V_X2 = 124, 125, 126, 127, 27, 28
ACCS = list(range(64, 80))
AV = 80
srd(44, P_WM, 448 * 2688 * 2)
srd(48, P_WQ, 448 * 4096 * 2)
srd(52, P_C, 1792)
srd(56, P_X, 1792)
I("v_lshrrev_b32 v3, 2, v2")
I("s_lshl_b32 s4, s3, 5"); I("v_add_u32 v3, s4, v3")
I("v_mov_b32 v96, v3")
I("s_mov_b32 s5, 5376"); I("v_mul_lo_u32 v4, v3, s5")
I("v_and_b32 v5, 3, v2"); I("v_lshlrev_b32 v5, 4, v5")
I("s_lshl_b32 s6, s2, 6"); I("v_add3_u32 v4, v4, v5, s6")
I("s_mov_b32 s60, 86016")
I("buffer_load_dwordx4 v[100:103], v4, s[44:47], 0 offen")
I("buffer_load_dwordx4 v[104:107], v4, s[44:47], s60 offen")
I("v_lshlrev_b32 v6, 1, v0")
I("buffer_load_ushort v7, v6, s[52:55], 0 offen")
I(f"buffer_load_ushort v{V_X}, v6, s[56:59], 0 offen")
I("s_cmp_ge_u32 s3, 7"); I("s_cselect_b32 s7, 896, 0")
I("v_lshlrev_b32 v8, 1, v2"); I("v_add_u32 v8, s7, v8")
for i in range(7):
    I(f"buffer_load_ushort v{10+i}, v8, s[56:59], 0 offen offset:{128*i}")
I("v_lshrrev_b32 v3, 4, v2")
I("s_mul_i32 s4, s3, 28"); I("v_add_u32 v3, s4, v3")
I("v_mov_b32 v97, v3")
I("v_lshlrev_b32 v4, 13, v3")
I("v_and_b32 v5, 15, v2"); I("v_lshlrev_b32 v5, 4, v5")
I("s_lshl_b32 s6, s2, 8"); I("v_add3_u32 v4, v4, v5, s6")
for i in range(7):
    I(f"s_mov_b32 s61, {i*32768}")
    I(f"buffer_load_dwordx4 v[{32+4*i}:{35+4*i}], v4, s[48:51], s61 offen")
I("v_add_u32 v3, 64, v0")
I("v_cmp_gt_u32 vcc, 448, v0")
I(f"v_cndmask_b32 v{V_AADDR}, v3, v0, vcc")
I("v_subrev_u32 v3, 896, v0")
I("v_and_b32 v4, 63, v3"); I("v_lshrrev_b32 v3, 6, v3"); I("v_lshlrev_b32 v3, 9, v3")
I("v_add3_u32 v3, v3, v4, s4" if False else "v_add_u32 v3, v3, v4")
I("v_add_u32 v3, 448, v3")
I("v_cmp_gt_u32 vcc, 896, v0")
I(f"v_cndmask_b32 v{V_AADDR}, v3, v{V_AADDR}, vcc")
I(f"v_lshlrev_b32 v{V_AADDR}, 2, v{V_AADDR}")
I("v_add_u32 v3, 2240, v0")
I("v_cmp_gt_u32 vcc, 448, v0")
I(f"v_cndmask_b32 v{V_K4}, v3, v0, vcc")
I(f"v_lshlrev_b32 v{V_K4}, 2, v{V_K4}")
I("s_waitcnt vmcnt(7)")
I("v_lshlrev_b32 v7, 16, v7")
I(f"v_lshlrev_b32 v{V_X}, 16, v{V_X}")
I(f"v_mul_f32 v8, {f32(-LOG2E)}, v7")
I("v_exp_f32 v8, v8")
I("v_add_f32 v8, 1.0, v8")
I("v_rcp_f32 v8, v8")
I("v_mul_f32 v8, v7, v8")
I(f"v_cvt_pk_bf16_f32 v{V_SILU}, v8, 0")
I(f"ds_write_b32 v{V_AADDR}, v{V_SILU} offset:{LDS_A}")
def ln_stats(xs, t0):
    s = t0
    I(f"v_add_f32 v{s}, v{xs[0]}, v{xs[1]}")
    for r in xs[2:]:
        I(f"v_add_f32 v{s}, v{s}, v{r}")
    allreduce16([s]); allreduce_swap([s], [t0 + 1], 16); allreduce_swap([s], [t0 + 1], 32)
    I(f"v_mul_f32 v{s}, {f32(1.0/448)}, v{s}")
    q = t0 + 2
    I(f"v_sub_f32 v{t0+1}, v{xs[0]}, v{s}")
    I(f"v_mul_f32 v{q}, v{t0+1}, v{t0+1}")
    for r in xs[1:]:
        I(f"v_sub_f32 v{t0+1}, v{r}, v{s}")
        I(f"v_fmac_f32 v{q}, v{t0+1}, v{t0+1}")
    allreduce16([q]); allreduce_swap([q], [t0 + 1], 16); allreduce_swap([q], [t0 + 1], 32)
    I(f"v_mul_f32 v{q}, {f32(1.0/448)}, v{q}")
    bf16r(s); bf16r(q)
    I(f"v_add_f32 v{q}, {f32(1e-5)}, v{q}"); bf16r(q)
    I(f"v_sqrt_f32 v{q}, v{q}"); bf16r(q)
    return s, q
for i in range(7):
    I(f"v_lshlrev_b32 v{10+i}, 16, v{10+i}")
mean, sd = ln_stats(list(range(10, 17)), 17)
def layernorm_elem(dst, x, mean, sd, t):
    I(f"v_sub_f32 v{dst}, v{x}, v{mean}"); bf16r(dst)
    I(f"v_rcp_f32 v{t}, v{sd}")
    I(f"v_mul_f32 v{dst}, v{dst}, v{t}"); bf16r(dst)
layernorm_elem(V_LN, V_X, mean, sd, 21)
I("s_waitcnt lgkmcnt(0)")
I("s_barrier")
def gemv(wregs, arow_reg, astride_rows, abase, bstride, nload):
    I(f"v_lshlrev_b32 v3, 2, v{arow_reg}")
    for i in range(nload):
        for b in range(2):
            I(f"ds_read_b32 v{AV + 2*i + b}, v3 offset:{abase + b*bstride + i*astride_rows*4}")
    for r in ACCS:
        I(f"v_mov_b32 v{r}, 0")
    I("s_waitcnt lgkmcnt(0)")
def gemv_mac(wq, i, tmp):
    I(f"v_lshlrev_b32 v{tmp}, 16, v{AV+2*i}")
    I(f"v_lshlrev_b32 v{tmp+1}, 16, v{AV+2*i+1}")
    for r in range(4):
        for b in range(2):
            I(f"v_dot2_f32_bf16 v{ACCS[b*8+2*r]}, v{wq+r}, v{AV+2*i+b}, v{ACCS[b*8+2*r]}")
            I(f"v_dot2_f32_bf16 v{ACCS[b*8+2*r+1]}, v{wq+r}, v{tmp+b}, v{ACCS[b*8+2*r+1]}")
gemv(None, 96, 16, LDS_A, 2048, 2)
I("s_waitcnt vmcnt(7)")
for i in range(2):
    gemv_mac(100 + 4 * i, i, 4)
r = treduce(ACCS, 5); r = treduce(r, 4); r = treduce(r, 3); r = treduce(r, 2)
I("s_lshl_b32 s4, s3, 8"); I("v_lshlrev_b32 v3, 2, v2"); I("v_add_u32 v3, s4, v3")
I(f"ds_write_b32 v3, v{r[0]} offset:{LDS_RED}")
I("s_waitcnt lgkmcnt(0)")
I("s_barrier")
Ls1 = a.newlabel("L_s1")
I("s_cmp_lg_u32 s3, 0"); I(f"s_cbranch_scc1 {Ls1}")
I("v_lshlrev_b32 v3, 2, v2")
for w in range(16):
    I(f"ds_read_b32 v{8+w}, v3 offset:{LDS_RED + 256*w}")
I("s_waitcnt lgkmcnt(0)")
for w in range(1, 16):
    I(f"v_add_f32 v8, v8, v{8+w}")
bf16r(8)
I("v_lshrrev_b32 v4, 5, v2"); I("s_mov_b32 s5, 2688"); I("v_mul_lo_u32 v4, v4, s5")
I("v_bfe_u32 v5, v2, 2, 3")
I("v_and_b32 v6, 3, v2"); I("v_lshlrev_b32 v6, 3, v6")
I("v_add3_u32 v4, v4, v5, v6")
I("s_lshl_b32 s5, s2, 5"); I("v_add_u32 v4, s5, v4"); I("v_lshlrev_b32 v4, 2, v4")
I(f"global_store_dword v4, v8, {sp(P_WS)} offset:{WS_MOD} sc1")
I("s_waitcnt vmcnt(0)")
signal(C_A, 4)
poll(C_A, 32, 4, 8, "L_pa")
a.label(Ls1)
I("s_barrier")
Ls2 = a.newlabel("L_s2")
I("s_cmp_ge_u32 s3, 14"); I(f"s_cbranch_scc1 {Ls2}")
I(f"global_load_dword v4, v{V_K4}, {sp(P_WS)} offset:{WS_MOD} sc1")
I(f"global_load_dword v5, v{V_K4}, {sp(P_WS)} offset:{WS_MOD+1792} sc1")
I("s_waitcnt vmcnt(0)")
I("v_add_f32 v5, 1.0, v5"); bf16r(5)
I(f"v_mul_f32 v5, v{V_LN}, v5"); bf16r(5)
I("v_add_f32 v5, v5, v4")
I("v_cvt_pk_bf16_f32 v5, v5, 0")
I(f"ds_write_b32 v{V_AADDR}, v5 offset:{LDS_A}")
I("s_waitcnt lgkmcnt(0)")
a.label(Ls2)
I("s_barrier")
gemv(None, 97, 4, LDS_A, 2048, 7)
I("s_waitcnt vmcnt(0)")
for i in range(7):
    gemv_mac(32 + 4 * i, i, 4)
r = treduce(ACCS, 5); r = treduce(r, 4)
assert r == ACCS[:4]
I("s_lshl_b32 s4, s3, 10"); I("v_lshlrev_b32 v3, 4, v2"); I("v_add_u32 v3, s4, v3")
I(f"ds_write_b128 v3, v[{r[0]}:{r[3]}] offset:{LDS_RED}")
I("s_waitcnt lgkmcnt(0)")
I("s_barrier")
Ls3 = a.newlabel("L_s3")
I("s_cmp_lg_u32 s3, 0"); I(f"s_cbranch_scc1 {Ls3}")
def red4(nw, stride, dst):
    I("v_lshlrev_b32 v3, 4, v2")
    for w in range(nw):
        I(f"ds_read_b128 v[{dst+4*w}:{dst+4*w+3}], v3 offset:{LDS_RED + stride*w}")
    I("s_waitcnt lgkmcnt(0)")
    for w in range(1, nw):
        for k in range(4):
            I(f"v_add_f32 v{dst+k}, v{dst+k}, v{dst+4*w+k}")
red4(16, 1024, 32)
I("v_cvt_pk_bf16_f32 v32, v32, v33"); I("v_cvt_pk_bf16_f32 v33, v34, v35")
I("v_lshrrev_b32 v4, 5, v2"); I("v_lshlrev_b32 v4, 12, v4")
I("v_bfe_u32 v5, v2, 4, 1"); I("v_lshlrev_b32 v5, 2, v5")
I("v_and_b32 v6, 15, v2"); I("v_lshlrev_b32 v6, 3, v6")
I("v_add3_u32 v4, v4, v5, v6")
I("s_lshl_b32 s5, s2, 7"); I("v_add_u32 v4, s5, v4"); I("v_lshlrev_b32 v4, 1, v4")
I(f"v_add_u32 v4, {WS_Q}, v4")
I(f"global_store_dwordx2 v4, v[32:33], {sp(P_WS)} sc1")
I("s_waitcnt vmcnt(0)")
I("s_lshr_b32 s5, s2, 1"); I("s_lshl_b32 s5, s5, 2")
I("v_mov_b32 v4, s5"); I("v_mov_b32 v5, 1")
I("s_mov_b64 exec, 1")
I(f"global_atomic_add v4, v5, {sp(P_DBG)} offset:{C_Q} sc1")
I("s_mov_b64 exec, -1")
a.label(Ls3)
Ls4 = a.newlabel("L_s4")
I("s_cmp_ge_u32 s2, 26"); I(f"s_cbranch_scc1 {Ls4}")
I("v_lshrrev_b32 v3, 3, v2"); I("s_lshl_b32 s4, s3, 5"); I("v_add_u32 v3, s4, v3")
I("v_mov_b32 v96, v3")
I("s_mov_b32 s5, 5376"); I("v_mul_lo_u32 v4, v3, s5")
I("v_and_b32 v5, 7, v2"); I("v_lshlrev_b32 v5, 4, v5")
I("s_lshl_b32 s6, s2, 7"); I("s_add_u32 s6, s6, 2048"); I("v_add3_u32 v4, v4, v5, s6")
for i in range(4):
    I(f"s_mov_b32 s61, {i*8*5376}")
    I(f"buffer_load_dwordx4 v[{32+4*i}:{35+4*i}], v4, s[44:47], s61 offen")
I(f"ds_write_b32 v{V_AADDR}, v{V_SILU} offset:{LDS_A}")
I("s_waitcnt lgkmcnt(0)")
I("s_barrier")
gemv(None, 96, 8, LDS_A, 2048, 4)
I("s_waitcnt vmcnt(0)")
for i in range(4):
    gemv_mac(32 + 4 * i, i, 4)
r = treduce(ACCS, 5); r = treduce(r, 4); r = treduce(r, 3)
I("s_lshl_b32 s4, s3, 9"); I("v_lshlrev_b32 v3, 3, v2"); I("v_add_u32 v3, s4, v3")
I(f"ds_write_b64 v3, v[{r[0]}:{r[1]}] offset:{LDS_RED}")
I("s_waitcnt lgkmcnt(0)")
I("s_barrier")
Ls5 = a.newlabel("L_s5")
I("s_cmp_lg_u32 s3, 0"); I(f"s_cbranch_scc1 {Ls5}")
def red2(ws, stride, dst):
    I("v_lshlrev_b32 v3, 3, v2")
    for n, w in enumerate(ws):
        I(f"ds_read_b64 v[{dst+2*n}:{dst+2*n+1}], v3 offset:{LDS_RED + stride*w}")
    I("s_waitcnt lgkmcnt(0)")
    for n in range(1, len(ws)):
        for k in range(2):
            I(f"v_add_f32 v{dst+k}, v{dst+k}, v{dst+2*n+k}")
red2(range(16), 512, 32)
bf16r(32); bf16r(33)
I("v_lshrrev_b32 v4, 5, v2"); I("s_mov_b32 s5, 2688"); I("v_mul_lo_u32 v4, v4, s5")
I("v_bfe_u32 v5, v2, 3, 2"); I("v_lshlrev_b32 v5, 1, v5")
I("v_and_b32 v6, 7, v2"); I("v_lshlrev_b32 v6, 3, v6")
I("v_add3_u32 v4, v4, v5, v6")
I("s_lshl_b32 s5, s2, 6"); I("s_add_u32 s5, s5, 1024"); I("v_add_u32 v4, s5, v4"); I("v_lshlrev_b32 v4, 2, v4")
I(f"global_store_dwordx2 v4, v[32:33], {sp(P_WS)} offset:{WS_MOD} sc1")
I("s_waitcnt vmcnt(0)")
signal(C_A2, 4)
a.label(Ls5)
a.label(Ls4)
WO_R, WGU_R, WD_R = 32, 96, 8
srd(44, P_WO, 4096 * 448 * 2)
srd(48, P_WG, 448 * 1792 * 2)
srd(52, P_WU, 448 * 1792 * 2)
srd(56, P_WD, 1792 * 448 * 2)
I("s_lshr_b32 s4, s2, 2"); I("s_and_b32 s5, s2, 3")
I("v_lshrrev_b32 v3, 4, v2"); I("s_lshl_b32 s6, s3, 5"); I("v_add_u32 v3, s6, v3")
I("v_mov_b32 v24, v3")
I("s_lshl_b32 s6, s4, 9"); I("v_add_u32 v3, s6, v3")
I("s_movk_i32 s6, 896"); I("v_mul_lo_u32 v4, v3, s6")
I("v_and_b32 v5, 15, v2"); I("v_lshlrev_b32 v6, 4, v5")
I("s_mul_i32 s6, s5, 224"); I("v_add3_u32 v4, v4, v6, s6")
I("v_mov_b32 v6, 0x40000000"); I("v_cmp_gt_u32 vcc, 14, v5"); I("v_cndmask_b32 v4, v6, v4, vcc")
for i in range(8):
    I(f"s_mov_b32 s7, {i*3584}")
    I(f"buffer_load_dwordx4 v[{WO_R+4*i}:{WO_R+4*i+3}], v4, s[44:47], s7 offen")
I("s_and_b32 s6, s3, 7"); I("s_mul_i32 s6, s6, 56")
I("v_lshrrev_b32 v3, 3, v2"); I("v_add_u32 v3, s6, v3")
I("v_mov_b32 v25, v3")
I("s_movk_i32 s6, 3584"); I("v_mul_lo_u32 v4, v3, s6")
I("v_and_b32 v5, 7, v2"); I("v_lshlrev_b32 v5, 4, v5")
I("s_lshl_b32 s6, s2, 7"); I("v_add3_u32 v4, v4, v5, s6")
I("s_cmp_ge_u32 s3, 8")
I("s_cselect_b32 s60, s52, s48"); I("s_cselect_b32 s61, s53, s49"); I("s_mov_b32 s62, s50"); I("s_mov_b32 s63, s51")
I("s_cmp_ge_u32 s2, 28"); I("s_cselect_b32 s62, 0, s62")
for i in range(7):
    I(f"s_mov_b32 s7, {i*8*3584}")
    I(f"buffer_load_dwordx4 v[{WGU_R+4*i}:{WGU_R+4*i+3}], v4, s[60:63], s7 offen")
I("s_lshl_b32 s6, s2, 6"); I("s_lshl_b32 s7, s3, 2"); I("s_add_u32 s6, s6, s7"); I("s_mul_i32 s6, s6, 896")
I("v_lshlrev_b32 v4, 4, v2"); I("v_add_u32 v4, s6, v4")
I("v_mov_b32 v6, 0x40000000"); I("v_cmp_gt_u32 vcc, 56, v2"); I("v_cndmask_b32 v4, v6, v4, vcc")
for i in range(4):
    I(f"buffer_load_dwordx4 v[{WD_R+4*i}:{WD_R+4*i+3}], v4, s[56:59], 0 offen offset:{i*896}")
Lt1 = a.newlabel("L_t1")
I("s_cmp_lg_u32 s3, 0"); I(f"s_cbranch_scc1 {Lt1}")
I("s_lshl_b32 s6, s4, 2"); I("v_mov_b32 v3, s6")
I("s_mov_b32 s90, 0")
a.label("L_pp")
I(f"global_load_dword v4, v3, {sp(P_DBG)} offset:{C_P} sc1")
I("s_waitcnt vmcnt(0)")
I("v_readfirstlane_b32 s8, v4")
I("s_cmp_ge_u32 s8, 28")
I("s_cbranch_scc1 L_ppd")
I("s_add_u32 s90, s90, 1")
I("s_cmp_ge_u32 s90, 100000")
I("s_cbranch_scc1 L_ppd")
I("s_sleep 1")
I("s_branch L_pp")
a.label("L_ppd")
a.label(Lt1)
I("s_barrier")
I("s_lshr_b32 s6, s3, 3"); I("s_lshl_b32 s6, s6, 4")
I("s_lshr_b32 s7, s3, 2"); I("s_and_b32 s7, s7, 1")
I("s_add_u32 s6, s6, s7"); I("s_lshl_b32 s7, s4, 1"); I("s_add_u32 s6, s6, s7")
I("s_mul_i32 s6, s6, 7")
I("s_lshl_b32 s7, s6, 10"); I(f"s_add_u32 s7, s7, {WS_PO}")
I("v_and_b32 v3, 255, v0"); I("v_lshlrev_b32 v3, 2, v3"); I("v_add_u32 v3, s7, v3")
I("v_add_u32 v4, 4096, v3")
for s in range(7):
    if s < 4: I(f"global_load_dword v{64+s}, v3, {sp(P_WS)} offset:{1024*s} sc1")
    else: I(f"global_load_dword v{64+s}, v4, {sp(P_WS)} offset:{1024*(s-4)} sc1")
I("s_lshl_b32 s7, s6, 3"); I(f"s_add_u32 s7, s7, {WS_PML}"); I("v_mov_b32 v5, s7")
for s in range(7):
    I(f"global_load_dwordx2 v[{72+2*s}:{73+2*s}], v5, {sp(P_WS)} offset:{8*s} sc1")
I("s_waitcnt vmcnt(0)")
I("v_max3_f32 v4, v72, v74, v76"); I("v_max3_f32 v4, v4, v78, v80"); I("v_max3_f32 v4, v4, v82, v84")
for s in range(7): I(f"v_sub_f32 v{72+2*s}, v{72+2*s}, v4")
for s in range(7): I(f"v_exp_f32 v{72+2*s}, v{72+2*s}")
I("v_mov_b32 v5, 0"); I("v_mov_b32 v6, 0")
for s in range(7):
    I(f"v_fmac_f32 v5, v{72+2*s}, v{73+2*s}")
    I(f"v_fmac_f32 v6, v{72+2*s}, v{64+s}")
I("v_rcp_f32 v5, v5")
I("v_mul_f32 v6, v6, v5")
I("v_cvt_pk_bf16_f32 v6, v6, 0")
I("v_lshlrev_b32 v3, 2, v0")
I(f"ds_write_b32 v3, v6 offset:{LDS_A}")
I("s_waitcnt lgkmcnt(0)")
I("s_barrier")
gemv(None, 24, 4, LDS_A, 2048, 8)
for i in range(8):
    gemv_mac(WO_R + 4 * i, i, 4)
r = treduce(ACCS, 5); r = treduce(r, 4)
I("s_lshl_b32 s6, s3, 10"); I("v_lshlrev_b32 v3, 4, v2"); I("v_add_u32 v3, s6, v3")
I(f"ds_write_b128 v3, v[{r[0]}:{r[3]}] offset:{LDS_RED}")
I("s_waitcnt lgkmcnt(0)")
I("s_barrier")
Lt2 = a.newlabel("L_t2")
I("s_cmp_lg_u32 s3, 0"); I(f"s_cbranch_scc1 {Lt2}")
red4(16, 1024, 32)
I("v_lshrrev_b32 v4, 5, v2"); I("s_movk_i32 s6, 448"); I("v_mul_lo_u32 v4, v4, s6")
I("v_bfe_u32 v5, v2, 4, 1"); I("v_lshlrev_b32 v5, 2, v5")
I("v_and_b32 v6, 15, v2"); I("v_lshlrev_b32 v7, 3, v6")
I("v_add3_u32 v4, v4, v5, v7")
I("s_mul_i32 s6, s4, 896"); I("s_mul_i32 s7, s5, 112"); I("s_add_u32 s6, s6, s7")
I("v_add_u32 v4, s6, v4"); I("v_lshlrev_b32 v4, 2, v4"); I(f"v_add_u32 v4, {WS_Y}, v4")
I("v_cmp_gt_u32 vcc, 14, v6")
I("s_and_saveexec_b64 s[8:9], vcc")
I(f"global_store_dwordx4 v4, v[32:35], {sp(P_WS)} sc1")
I("s_mov_b64 exec, s[8:9]")
I("s_waitcnt vmcnt(0)")
signal(C_Y, 4)
a.label(Lt2)
I("s_cmp_ge_u32 s2, 28"); I("s_cbranch_scc1 L_end")
Lt3 = a.newlabel("L_t3")
I("s_cmp_lg_u32 s3, 0"); I(f"s_cbranch_scc1 {Lt3}")
poll(C_A2, 26, 4, 8, "L_pa2")
poll(C_Y, 32, 4, 8, "L_py")
a.label(Lt3)
I("s_barrier")
Lt4 = a.newlabel("L_t4")
I("s_cmp_ge_u32 s3, 14"); I(f"s_cbranch_scc1 {Lt4}")
I("v_lshlrev_b32 v3, 2, v0"); I(f"v_add_u32 v3, {WS_Y}, v3")
for kc in range(8):
    I(f"v_add_u32 v4, {kc*3584}, v3")
    I(f"global_load_dword v{64+kc}, v4, {sp(P_WS)} sc1")
I(f"global_load_dword v72, v{V_K4}, {sp(P_WS)} offset:{WS_MOD+896*4} sc1")
I(f"v_add_u32 v4, {1344*4}, v{V_K4}")
I(f"global_load_dword v73, v4, {sp(P_WS)} offset:{WS_MOD} sc1")
I(f"global_load_dword v74, v4, {sp(P_WS)} offset:{WS_MOD+1792} sc1")
I("s_waitcnt vmcnt(0)")
for kc in range(1, 8): I(f"v_add_f32 v64, v64, v{64+kc}")
bf16r(64)
I("v_mul_f32 v64, v72, v64"); bf16r(64)
I(f"v_add_f32 v{V_X2}, v{V_X}, v64"); bf16r(V_X2)
I("v_lshlrev_b32 v3, 2, v0")
I(f"ds_write_b32 v3, v{V_X2} offset:{LDS_X2}")
I("s_waitcnt lgkmcnt(0)")
a.label(Lt4)
I("s_barrier")
Lt5 = a.newlabel("L_t5")
I("s_cmp_ge_u32 s3, 14"); I(f"s_cbranch_scc1 {Lt5}")
I("s_cmp_ge_u32 s3, 7"); I("s_cselect_b32 s7, 1792, 0")
I("v_lshlrev_b32 v3, 2, v2"); I("v_add_u32 v3, s7, v3")
for i in range(7):
    I(f"ds_read_b32 v{64+i}, v3 offset:{LDS_X2 + 256*i}")
I("s_waitcnt lgkmcnt(0)")
mean, sd = ln_stats(list(range(64, 71)), 76)
layernorm_elem(71, V_X2, mean, sd, 72)
I("v_add_f32 v74, 1.0, v74"); bf16r(74)
I("v_mul_f32 v74, v71, v74"); bf16r(74)
I("v_add_f32 v74, v74, v73")
I("v_cvt_pk_bf16_f32 v74, v74, 0")
I(f"ds_write_b32 v{V_AADDR}, v74 offset:{LDS_A}")
I("s_waitcnt lgkmcnt(0)")
a.label(Lt5)
I("s_barrier")
gemv(None, 25, 8, LDS_A, 2048, 7)
for i in range(7):
    gemv_mac(WGU_R + 4 * i, i, 4)
r = treduce(ACCS, 5); r = treduce(r, 4); r = treduce(r, 3)
I("s_lshl_b32 s6, s3, 9"); I("v_lshlrev_b32 v3, 3, v2"); I("v_add_u32 v3, s6, v3")
I(f"ds_write_b64 v3, v[{r[0]}:{r[1]}] offset:{LDS_RED}")
I("s_waitcnt lgkmcnt(0)")
I("s_barrier")
Lt6 = a.newlabel("L_t6")
I("s_cmp_lg_u32 s3, 0"); I(f"s_cbranch_scc1 {Lt6}")
red2(range(8), 512, 32)
red2(range(8, 16), 512, 48)
for k in range(2):
    g, u = 32 + k, 48 + k
    bf16r(g); bf16r(u)
    I(f"v_mul_f32 v4, v{g}, v{g}")
    I(f"v_mov_b32 v5, {f32(0.044715)}")
    I("v_fma_f32 v4, v4, v5, 1.0")
    I(f"v_mul_f32 v4, v4, v{g}")
    I(f"v_mul_f32 v4, {f32(2 * 0.7978845608028654 * LOG2E)}, v4")
    I("v_exp_f32 v4, v4")
    I("v_add_f32 v4, 1.0, v4")
    I("v_rcp_f32 v4, v4")
    I("v_fma_f32 v4, v4, -2.0, 1.0")
    I("v_add_f32 v4, 1.0, v4")
    I(f"v_mul_f32 v4, v4, v{g}")
    I("v_mul_f32 v4, 0.5, v4"); bf16r(4)
    I(f"v_mul_f32 v4, v4, v{u}")
    I(f"v_cvt_pk_bf16_f32 v{g}, v4, 0")
I("v_lshrrev_b32 v4, 5, v2"); I("v_lshlrev_b32 v4, 6, v4")
I("v_bfe_u32 v5, v2, 3, 2"); I("v_lshlrev_b32 v5, 1, v5")
I("v_and_b32 v6, 7, v2"); I("v_lshlrev_b32 v6, 3, v6")
I("v_add3_u32 v4, v4, v5, v6"); I("v_lshlrev_b32 v4, 2, v4")
I(f"ds_write_b64 v4, v[32:33] offset:{LDS_A2}")
I("s_waitcnt lgkmcnt(0)")
a.label(Lt6)
I("s_barrier")
I("s_lshl_b32 s6, s3, 2"); I("v_mov_b32 v26, s6")
gemv(None, 26, 1, LDS_A2, 256, 4)
for i in range(4):
    gemv_mac(WD_R + 4 * i, i, 4)
I("s_mul_i32 s6, s3, 3584"); I("v_lshlrev_b32 v3, 5, v2"); I("v_add_u32 v3, s6, v3")
I("v_cmp_gt_u32 vcc, 56, v2")
I("s_and_saveexec_b64 s[8:9], vcc")
for b in range(2):
    I(f"ds_write_b128 v3, v[{ACCS[b*8]}:{ACCS[b*8+3]}] offset:{LDS_RED + b*1792}")
    I(f"ds_write_b128 v3, v[{ACCS[b*8+4]}:{ACCS[b*8+7]}] offset:{LDS_RED + b*1792 + 16}")
I("s_mov_b64 exec, s[8:9]")
I("s_waitcnt lgkmcnt(0)")
I("s_barrier")
Lt7 = a.newlabel("L_t7")
I("s_cmp_ge_u32 s3, 14"); I(f"s_cbranch_scc1 {Lt7}")
I("v_lshlrev_b32 v3, 2, v0")
for w in range(16):
    I(f"ds_read_b32 v{64+w}, v3 offset:{LDS_RED + 3584*w}")
I("s_waitcnt lgkmcnt(0)")
for w in range(1, 16): I(f"v_add_f32 v64, v64, v{64+w}")
I("s_mul_i32 s6, s2, 3584"); I(f"s_add_u32 s6, s6, {WS_Z}"); I("v_add_u32 v3, s6, v3")
I(f"global_store_dword v3, v64, {sp(P_WS)} sc1")
I("s_waitcnt vmcnt(0)")
a.label(Lt7)
I("s_barrier")
I("s_cmp_lg_u32 s3, 0"); I("s_cbranch_scc1 L_end")
signal(C_Z, 4)
poll(C_Z, 28, 4, 8, "L_pz")
I("v_lshrrev_b32 v4, 4, v2"); I("v_and_b32 v4, 1, v4"); I("s_movk_i32 s6, 448"); I("v_mul_lo_u32 v4, v4, s6")
I("v_and_b32 v5, 15, v2"); I("s_lshl_b32 s6, s2, 4"); I("v_add3_u32 v4, v4, v5, s6")
I("v_lshlrev_b32 v5, 2, v4")
I(f"v_add_u32 v6, {WS_Z}, v5")
for p in range(28):
    I(f"global_load_dword v{64+p}, v6, {sp(P_WS)} sc1")
    if p < 27: I("v_add_u32 v6, 3584, v6")
I("v_lshrrev_b32 v7, 4, v2"); I("v_and_b32 v7, 1, v7"); I("s_movk_i32 s6, 2240"); I("v_mul_lo_u32 v7, v7, s6")
I("v_add3_u32 v7, v7, v4, s6"); I("v_lshlrev_b32 v7, 2, v7")
I(f"global_load_dword v92, v7, {sp(P_WS)} offset:{WS_MOD} sc1")
I(f"ds_read_b32 v93, v5 offset:{LDS_X2}")
I("s_waitcnt vmcnt(0) lgkmcnt(0)")
for p in range(1, 28): I(f"v_add_f32 v64, v64, v{64+p}")
bf16r(64)
I("v_mul_f32 v64, v92, v64"); bf16r(64)
I("v_add_f32 v64, v93, v64")
I("v_cvt_pk_bf16_f32 v64, v64, v64")
srd(44, P_OUT, 1792)
I("v_lshlrev_b32 v4, 1, v4")
I("v_cmp_gt_u32 vcc, 32, v2")
I("s_and_saveexec_b64 s[8:9], vcc")
I("buffer_store_short v64, v4, s[44:47], 0 offen")
a.label("L_end")
I("s_endpgm")
a.raw('.section .rodata,"a"'); a.raw(".p2align 6"); a.raw(f".amdhsa_kernel {NAME}")
a.raw("  .amdhsa_next_free_vgpr 128"); a.raw("  .amdhsa_next_free_sgpr 96"); a.raw("  .amdhsa_accum_offset 128")
a.raw("  .amdhsa_group_segment_fixed_size 0"); a.raw("  .amdhsa_kernarg_size 112"); a.raw("  .amdhsa_user_sgpr_count 2")
a.raw("  .amdhsa_user_sgpr_kernarg_segment_ptr 1"); a.raw("  .amdhsa_system_sgpr_workgroup_id_x 1"); a.raw(".end_amdhsa_kernel")
out = sys.argv[1] if len(sys.argv) > 1 else "adaLN_cond__mha_block_cached__geglu_ffn__decode.s"
open(out, "w").write(a.text())
print("wrote", out, len(a.lines), "lines")
```

```python
import re

TRANS = ("v_exp_f32", "v_log_f32", "v_rcp_f32", "v_rsq_f32", "v_sqrt_f32", "v_sin_f32", "v_cos_f32")


def _regs(tok):
    tok = tok.strip()
    out = set()
    m = re.fullmatch(r"(-|abs\()?\s*([vs])\[(\d+):(\d+)\]\)?", tok)
    if m:
        for i in range(int(m.group(3)), int(m.group(4)) + 1):
            out.add((m.group(2), i))
        return out
    m = re.fullmatch(r"(-|abs\()?\s*([vs])(\d+)\)?", tok)
    if m:
        out.add((m.group(2), int(m.group(3))))
        return out
    if tok in ("vcc", "vcc_lo", "vcc_hi"):
        out.add(("vcc", 0))
    if tok in ("exec",):
        out.add(("exec", 0))
    return out


class Asm:
    def __init__(self):
        self.lines = []
        self.hist = []
        self.nlab = 0

    def raw(self, s):
        self.lines.append(s)

    def comment(self, s):
        self.lines.append("  ; " + s)

    def label(self, name):
        self.lines.append("  s_nop 4")
        self.hist = []
        self.lines.append(name + ":")

    def newlabel(self, base="L"):
        self.nlab += 1
        return f"{base}_{self.nlab}"

    def nop(self, n):
        while n > 0:
            k = min(n, 8)
            self.lines.append(f"  s_nop {k-1}")
            for _ in range(k):
                self.hist.append(dict(kind="nop", wv=set(), ws=set(), store=set()))
            n -= k

    def __call__(self, text):
        text = text.strip()
        op, _, rest = text.partition(" ")
        toks = [t.strip() for t in rest.split(",")]
        ops = []
        for t in toks:
            if not t:
                continue
            first = t.split(" ")[0] if not t.startswith("abs(") else t.split(" ")[0]
            ops.append(first)
        mo = re.search(r"offset:(-?\d+)", rest)
        if mo:
            ov = int(mo.group(1))
            if op.startswith("buffer_"): assert 0 <= ov <= 4095, text
            if op.startswith("global_"): assert -4096 <= ov <= 4095, text
            if op.startswith("ds_"): assert 0 <= ov <= 65535, text
        is_valu = op.startswith("v_")
        is_dpp = "_dpp" in op or "dpp" in rest.split() or "quad_perm" in rest or "row_" in rest
        is_trans = op in TRANS or op.replace("_e32", "") in TRANS
        is_perm = op.startswith("v_permlane")
        is_rdl = op.startswith("v_readlane") or op.startswith("v_readfirstlane")
        is_vmem = op.startswith(("buffer_", "global_", "flat_"))
        is_ds = op.startswith("ds_")
        is_store = is_vmem and ("store" in op or "atomic" in op)
        is_mfma = op.startswith("v_mfma")
        wv, ws_, rv, rs = set(), set(), set(), set()
        if is_valu:
            if op.startswith("v_cmp"):
                d = _regs(ops[0]); srcs = ops[1:]
            elif is_perm:
                d = _regs(ops[0]) | _regs(ops[1]); srcs = ops[0:2]
            elif op.startswith("v_add_co") or op.startswith("v_addc_co") or op.startswith("v_sub_co"):
                d = _regs(ops[0]) | _regs(ops[1]); srcs = ops[2:]
            else:
                d = _regs(ops[0]); srcs = ops[1:]
                if op.startswith(("v_fmac", "v_dot2c")):
                    srcs = ops
            for r in d:
                (wv if r[0] == "v" else ws_).add(r)
            for s in srcs:
                for r in _regs(s):
                    (rv if r[0] == "v" else rs).add(r)
            if op.startswith("v_cndmask") and len(ops) == 3:
                rs.add(("vcc", 0))
        elif is_vmem or is_ds:
            for s in ops:
                for r in _regs(s):
                    (rv if r[0] == "v" else rs).add(r)
        need = 0
        n = len(self.hist)
        for idx in range(max(0, n - 14), n):
            h = self.hist[idx]
            dist = n - 1 - idx
            if h.get("mfma"):
                if (not is_mfma) and (h["wv"] & (rv | wv)):
                    need = max(need, 10 - dist)
                if is_mfma and (h["wv"] & rv):
                    need = max(need, 10 - dist)
                continue
            if h["kind"] == "valu" and is_mfma and (h["wv"] & rv):
                need = max(need, 2 - dist)
            if h["kind"] == "valu":
                if is_valu and (is_dpp or is_perm) and (h["wv"] & rv):
                    need = max(need, 2 - dist)
                if is_valu and h.get("trans") and not is_trans and (h["wv"] & (rv | wv)):
                    need = max(need, 1 - dist)
                if is_rdl and (h["wv"] & rv):
                    need = max(need, 1 - dist)
                if is_valu and (h["ws"] & rs):
                    need = max(need, (4 if is_rdl else 2) - dist)
                if is_vmem and (h["ws"] & rs):
                    need = max(need, 5 - dist)
                if (not is_valu) and (not is_vmem) and (not is_ds) and h["ws"]:
                    allr = set()
                    for s in ops:
                        allr |= _regs(s)
                    if h["ws"] & allr:
                        need = max(need, 1 - dist)
            if h["store"] and is_valu and (h["store"] & wv):
                need = max(need, 2 - dist)
        if need > 0:
            self.nop(need)
        self.lines.append("  " + text)
        rec = dict(kind="valu" if is_valu else "other", wv=wv, ws=ws_, trans=is_trans, store=set(), mfma=is_mfma)
        if is_store and ("x4" in op or "x3" in op):
            st = set()
            for s in ops:
                st |= {r for r in _regs(s) if r[0] == "v"}
            rec["store"] = st
        self.hist.append(rec)
        if len(self.hist) > 32:
            self.hist = self.hist[-32:]

    def text(self):
        return "\n".join(self.lines) + "\n"
```

```python
import struct, sys, os
from asmlib import Asm

NAME = "adaLN_cond__mha_block_cached__geglu_ffn__decode_kernel"
NT = os.environ.get("NT", "nt")
NSVC = 32
NWG = 256
WIN = int(os.environ.get("WIN", "0"))
STAMP = int(os.environ.get("STAMP", "0"))

def f32(x):
    return "0x%08x" % struct.unpack("<I", struct.pack("<f", x))[0]

LOG2E = 1.4426950408889634

WS_MOD = 0x0
WS_INIT = 0x10000
WS_PO = 0x10000
WS_PML = 0x48000
WS_Y = 0x49000
WS_Z = 0x50000
WS_QP = 0x80000
WS_ST = 0x200000
C_Q = 0
C_A2 = 4

P_X, P_K, P_V, P_WQ, P_WO, P_BX, P_WG, P_WU, P_WD, P_C, P_WM, P_OUT, P_DBG, P_WS = [16 + 2 * i for i in range(14)]
def sp(p): return f"s[{p}:{p+1}]"

a = Asm()
I = a

def stamp(idx):
    if STAMP:
        I(f"s_memrealtime s[{66+2*idx}:{67+2*idx}]")
def stamp_flush(n):
    if not STAMP: return
    I("s_waitcnt lgkmcnt(0)")
    I("s_lshl_b32 s91, s2, 4"); I("s_add_u32 s91, s91, s3"); I("s_lshl_b32 s91, s91, 6"); I(f"s_add_u32 s91, s91, {WS_ST}")
    I("s_mov_b64 s[92:93], exec")
    I("s_mov_b64 exec, 1")
    I("v_mov_b32 v1, s91")
    for k in range(n):
        I(f"v_mov_b32 v3, s{66+2*k}")
        I(f"global_store_dword v1, v3, {sp(P_WS)} offset:{4*k}")
    I("s_mov_b64 exec, s[92:93]")

def srd(dst, ptr, nbytes):
    I(f"s_mov_b32 s{dst}, s{ptr}")
    I(f"s_and_b32 s{dst+1}, s{ptr+1}, 0xffff")
    I(f"s_mov_b32 s{dst+2}, {nbytes}")
    I(f"s_mov_b32 s{dst+3}, 0x20000")

def bf16r(v):
    I(f"v_cvt_pk_bf16_f32 v{v}, v{v}, v{v}")
    I(f"v_lshlrev_b32 v{v}, 16, v{v}")

def sanitize(regs):
    for r in regs:
        I(f"v_min_u32 v{r}, 0xfffffffe, v{r}" if False else f"v_min_u32 v{r}, s94, v{r}")

TMO = int(os.environ.get("TMO", "200000"))
def poll(off, target, vt, st, lab, sleep=1):
    L = a.newlabel(lab); D = a.newlabel(lab + "d")
    I(f"v_mov_b32 v{vt}, 0")
    I("s_mov_b32 s90, 0")
    a.label(L)
    I(f"global_load_dword v{vt+1}, v{vt}, {sp(P_DBG)} offset:{off} sc1")
    I("s_waitcnt vmcnt(0)")
    I(f"v_readfirstlane_b32 s{st}, v{vt+1}")
    I(f"s_cmp_ge_u32 s{st}, {target}")
    I(f"s_cbranch_scc1 {D}")
    I("s_add_u32 s90, s90, 1")
    I(f"s_cmp_ge_u32 s90, {TMO}")
    I(f"s_cbranch_scc1 {D}")
    I(f"s_sleep {sleep}")
    I(f"s_branch {L}")
    a.label(D)

def signal(off, vt):
    I(f"v_mov_b32 v{vt}, 0")
    I(f"v_mov_b32 v{vt+1}, 1")
    I("s_mov_b64 exec, 1")
    I(f"global_atomic_add v{vt}, v{vt+1}, {sp(P_DBG)} offset:{off} sc1")
    I("s_mov_b64 exec, -1")

def validated_loads(emit_loads, regs, tmp, lab, sleep=0):
    L = a.newlabel(lab); D = a.newlabel(lab + "d")
    I("s_mov_b32 s90, 0")
    a.label(L)
    emit_loads()
    I("s_waitcnt vmcnt(0)")
    rs = list(regs)
    if len(rs) == 1:
        I(f"v_mov_b32 v{tmp}, v{rs[0]}")
    else:
        I(f"v_max_u32 v{tmp}, v{rs[0]}, v{rs[1]}")
        k = 2
        while k < len(rs):
            if k + 1 < len(rs):
                I(f"v_max3_u32 v{tmp}, v{tmp}, v{rs[k]}, v{rs[k+1]}"); k += 2
            else:
                I(f"v_max_u32 v{tmp}, v{tmp}, v{rs[k]}"); k += 1
    I(f"v_cmp_eq_u32 vcc, -1, v{tmp}")
    I(f"s_cbranch_vccz {D}")
    I("s_add_u32 s90, s90, 1")
    I(f"s_cmp_ge_u32 s90, {TMO}")
    I(f"s_cbranch_scc1 {D}")
    if sleep: I(f"s_sleep {sleep}")
    I(f"s_branch {L}")
    a.label(D)

def allreduce16(regs, op="v_add_f32"):
    for perm in ("quad_perm:[1,0,3,2]", "quad_perm:[2,3,0,1]", "row_half_mirror", "row_mirror"):
        for r in regs:
            I(f"{op}_dpp v{r}, v{r}, v{r} {perm} row_mask:0xf bank_mask:0xf")

def allreduce_swap(regs, temps, which, op="v_add_f32"):
    for r, t in zip(regs, temps):
        I(f"v_mov_b32 v{t}, v{r}")
    for r, t in zip(regs, temps):
        I(f"v_permlane{which}_swap_b32 v{r}, v{t}")
    for r, t in zip(regs, temps):
        I(f"{op} v{r}, v{r}, v{t}")

def treduce(regs, bit):
    n = len(regs) // 2
    lo, hi = regs[:n], regs[n:]
    if bit in (5, 4):
        w = 32 if bit == 5 else 16
        for x, y in zip(lo, hi):
            I(f"v_permlane{w}_swap_b32 v{x}, v{y}")
        for x, y in zip(lo, hi):
            I(f"v_add_f32 v{x}, v{x}, v{y}")
    elif bit == 3:
        for x, y in zip(lo, hi):
            I(f"v_add_f32_dpp v{x}, v{x}, v{x} row_ror:8 row_mask:0xf bank_mask:0x3")
        for x, y in zip(lo, hi):
            I(f"v_add_f32_dpp v{x}, v{y}, v{y} row_ror:8 row_mask:0xf bank_mask:0xc")
    elif bit == 2:
        for x, y in zip(lo, hi):
            I(f"v_add_f32_dpp v{x}, v{x}, v{x} row_shl:4 row_mask:0xf bank_mask:0x5")
        for x, y in zip(lo, hi):
            I(f"v_add_f32_dpp v{x}, v{y}, v{y} row_shr:4 row_mask:0xf bank_mask:0xa")
    return lo

a.raw(f"; @launch grid=({NWG},1,1) block=(1024,1,1) lds=163840")
a.raw('.amdgcn_target "amdgcn-amd-amdhsa--gfx950"')
a.raw(".text"); a.raw(f".globl {NAME}"); a.raw(".p2align 8"); a.raw(f".type {NAME},@function"); a.raw(f"{NAME}:")
I(f"s_cmp_ge_u32 s2, {NWG}")
I("s_cbranch_scc1 L_end")
I("s_load_dwordx16 s[16:31], s[0:1], 0")
I("s_load_dwordx8 s[32:39], s[0:1], 64")
I("s_load_dwordx4 s[40:43], s[0:1], 96")
I("v_lshrrev_b32 v1, 6, v0")
I("v_and_b32 v2, 63, v0")
I("v_readfirstlane_b32 s3, v1")
I("s_mov_b32 s94, 0xfffffffe")
I("s_mov_b32 s95, 0x05040100")
I("s_mov_b32 s96, 0x07060302")
I("s_waitcnt lgkmcnt(0)")
I(f"s_cmp_lt_u32 s2, {NSVC}")
I("s_cbranch_scc1 L_service")

if os.environ.get("NOSTREAM"): I("s_endpgm")
NS = 20; NVP = 7; KB = 8; VB = 88; T0 = 116; ACC = 120; QR = 4
I(f"s_sub_u32 s4, s2, {NSVC}")
I("s_mul_i32 s5, s4, 9363"); I("s_lshr_b32 s5, s5, 16")
I("s_mul_i32 s6, s5, 7"); I("s_sub_u32 s6, s4, s6")
stamp(0)
I("s_cmp_eq_u32 s3, 15")
I("s_cbranch_scc1 L_ctrl")
srd(44, P_K, 0x4000000)
srd(48, P_V, 0x4000000)
I("s_mul_i32 s7, s6, 15"); I("s_add_u32 s7, s7, s3")
I("s_lshl_b32 s8, s7, 11")
I(f"s_mov_b32 s9, {(2**32 + 104)//105}")
I("s_mul_hi_u32 s10, s8, s9")
I("s_add_u32 s8, s8, 2048"); I("s_mul_hi_u32 s11, s8, s9")
I("s_sub_u32 s11, s11, s10")
I("s_lshl_b32 s12, s5, 21"); I("s_lshl_b32 s13, s10, 10"); I("s_add_u32 s12, s12, s13")
I("v_lshlrev_b32 v3, 4, v2"); I("v_add_u32 v1, s12, v3")
I("s_mov_b32 s60, 4096"); I("s_mov_b32 s61, 8192"); I("s_mov_b32 s62, 12288"); I("s_mov_b32 s63, 16384")
I("s_mov_b32 s64, 0x40000000"); I("s_mov_b32 s65, 0xff800000")
I("s_cmp_eq_u32 s11, 20"); I("s_cselect_b32 s64, s63, s64"); I("s_cselect_b32 s65, 0, s65")
so = {0: "0", 1: "s60", 2: "s61", 3: "s62", 4: "s63"}
issued = []
def sload(kind, i, reg):
    s = so[i // 4] if i != NS - 1 else "s64"
    r = 44 if kind == "K" else 48
    I(f"buffer_load_dwordx4 v[{reg}:{reg+3}], v1, s[{r}:{r+3}], {s} offen offset:{(i%4)*1024} {NT}")
    issued.append((kind, i))
def swait(kind, i):
    idx = issued.index((kind, i))
    I(f"s_waitcnt vmcnt({len(issued) - 1 - idx})")
def throttle():
    if WIN and len(issued) >= WIN:
        I(f"s_waitcnt vmcnt({WIN-1})")
vreg = {}
NVL = 8
LDS_V = 33792
for i in range(NS):
    throttle(); sload("K", i, KB + 4 * i)
for i in range(NVP):
    vreg[i] = VB + 4 * i
    throttle(); sload("V", i, vreg[i])
I(f"s_lshl_b32 s14, s3, 13"); I(f"s_add_u32 s14, s14, {LDS_V}")
for i in range(NVP, NVP + NVL):
    throttle()
    I(f"s_add_u32 s15, s14, {(i - NVP) * 1024 - (i % 4) * 1024 + 4096}"); I("s_sub_u32 m0, s15, 4096")
    I("s_nop 0")
    I(f"buffer_load_dwordx4 v1, s[48:51], {so[i // 4]} offen offset:{(i%4)*1024} {NT} lds")
    issued.append(("V", i))
stamp(1)
I("s_barrier")
stamp(2)
I("v_and_b32 v3, 31, v2"); I("v_lshlrev_b32 v3, 4, v3")
I(f"ds_read_b128 v[{QR}:{QR+3}], v3")
I("s_waitcnt lgkmcnt(0)")
nextv = NVP + NVL
for g0 in range(0, NS, 4):
    grp = list(range(g0, g0 + 4))
    swait("K", grp[-1])
    if g0 == 0:
        for r in range(4):
            I(f"v_dot2_f32_bf16 v{KB}, v{KB+r}, v{QR+r}, " + ("0" if r == 0 else f"v{KB}"))
    for r in range(4):
        for s in grp:
            if s == 0: continue
            d = KB + s
            src2 = "0" if r == 0 else f"v{d}"
            I(f"v_dot2_f32_bf16 v{d}, v{KB+4*s+r}, v{QR+r}, {src2}")
    for s in grp:
        if s >= 5 + NVL and nextv < NS:
            vreg[nextv] = KB + 4 * s
            sload("V", nextv, vreg[nextv]); nextv += 1
    ds = [KB + s for s in grp]
    allreduce16(ds)
    allreduce_swap(ds, [T0 + k for k in range(4)], 16)
    for d in ds: I(f"v_cvt_pk_bf16_f32 v{d}, v{d}, v{d}")
    for d in ds: I(f"v_lshlrev_b32 v{d}, 16, v{d}")
    for d in ds: I(f"v_mul_f32 v{d}, {f32(0.0625 * LOG2E)}, v{d}")
assert nextv == NS
stamp(3)
I(f"v_add_f32 v{KB+NS-1}, s65, v{KB+NS-1}")
M_, L_ = 4, 5
I(f"v_max3_f32 v{M_}, v{KB}, v{KB+1}, v{KB+2}")
for s in range(3, NS - 1, 2):
    I(f"v_max3_f32 v{M_}, v{M_}, v{KB+s}, v{KB+s+1}")
I(f"v_max_f32 v{M_}, v{M_}, v{KB+NS-1}")
for s in range(NS): I(f"v_sub_f32 v{KB+s}, v{KB+s}, v{M_}")
for s in range(NS): I(f"v_exp_f32 v{KB+s}, v{KB+s}")
I(f"v_add_f32 v{L_}, v{KB}, v{KB+1}")
for s in range(2, NS): I(f"v_add_f32 v{L_}, v{L_}, v{KB+s}")
for s in range(NS): I(f"v_cvt_pk_bf16_f32 v{KB+s}, v{KB+s}, 0")
for j in range(8): I(f"v_mov_b32 v{ACC+j}, 0")
I("v_lshlrev_b32 v6, 4, v2"); I("v_add_u32 v6, s14, v6")
for s in range(NS):
    if s == NVP - 2:
        swait("V", NVP + NVL - 1)
        for k in range(NVL):
            vreg[NVP + k] = KB + 4 * (5 + k)
            I(f"ds_read_b128 v[{vreg[NVP+k]}:{vreg[NVP+k]+3}], v6 offset:{1024*k}")
    if s == NVP:
        I("s_waitcnt lgkmcnt(0)")
    if not (NVP <= s < NVP + NVL):
        swait("V", s)
    t = T0 + (s & 1)
    I(f"v_lshlrev_b32 v{t}, 16, v{KB+s}")
    for r in range(4):
        I(f"v_dot2_f32_bf16 v{ACC+2*r}, v{vreg[s]+r}, v{KB+s}, v{ACC+2*r}")
        I(f"v_dot2_f32_bf16 v{ACC+2*r+1}, v{vreg[s]+r}, v{t}, v{ACC+2*r+1}")
stamp(4)
LDS_O = 1024; LDS_ML = 32768
I("v_lshrrev_b32 v6, 5, v2")
I("s_lshl_b32 s7, s3, 1")
I("v_add_u32 v6, s7, v6")
I("v_lshlrev_b32 v7, 10, v6")
I("v_and_b32 v3, 31, v2"); I("v_lshlrev_b32 v8, 5, v3"); I("v_add_u32 v7, v7, v8")
I(f"ds_write_b128 v7, v[{ACC}:{ACC+3}] offset:{LDS_O}")
I(f"ds_write_b128 v7, v[{ACC+4}:{ACC+7}] offset:{LDS_O+16}")
I("v_lshlrev_b32 v6, 3, v6")
I("v_cmp_eq_u32 vcc, 0, v3")
I("s_and_saveexec_b64 s[8:9], vcc")
I(f"ds_write_b64 v6, v[{M_}:{M_+1}] offset:{LDS_ML}")
I("s_mov_b64 exec, s[8:9]")
I("s_waitcnt lgkmcnt(0)")
a.label("L_b2")
I("s_barrier")
stamp(5)
I("s_cmp_ge_u32 s3, 4")
I("s_cbranch_scc1 L_send")
I("v_mov_b32 v1, 0")
for k in range(15):
    I(f"ds_read_b128 v[{8+4*k}:{11+4*k}], v1 offset:{LDS_ML+16*k}")
I("v_lshlrev_b32 v2, 2, v0")
for k in range(30):
    I(f"ds_read_b32 v{70+k}, v2 offset:{LDS_O+1024*k}")
I("s_waitcnt lgkmcnt(0)")
ms = [8 + 2 * k for k in range(30)]
I(f"v_max3_f32 v4, v{ms[0]}, v{ms[1]}, v{ms[2]}")
for k in range(3, 29, 2):
    I(f"v_max3_f32 v4, v4, v{ms[k]}, v{ms[k+1]}")
I(f"v_max_f32 v4, v4, v{ms[29]}")
for k in range(30): I(f"v_sub_f32 v{ms[k]}, v{ms[k]}, v4")
for k in range(30): I(f"v_exp_f32 v{ms[k]}, v{ms[k]}")
I("v_mov_b32 v5, 0"); I("v_mov_b32 v6, 0")
for k in range(30):
    I(f"v_fmac_f32 v5, v{ms[k]}, v{ms[k]+1}")
    I(f"v_fmac_f32 v6, v{ms[k]}, v{70+k}")
sanitize([4, 5, 6])
I("s_lshl_b32 s7, s4, 10")
I("v_add_u32 v2, s7, v2")
I(f"v_add_u32 v2, {WS_PO}, v2")
I(f"global_store_dword v2, v6, {sp(P_WS)} sc1")
I("s_lshl_b32 s7, s4, 3")
I(f"s_add_u32 s7, s7, {WS_PML}")
I("v_mov_b32 v3, s7")
I("v_cmp_eq_u32 vcc, 0, v0")
I("s_and_saveexec_b64 s[8:9], vcc")
I(f"global_store_dwordx2 v3, v[4:5], {sp(P_WS)} sc1")
I("s_mov_b64 exec, s[8:9]")
a.label("L_send")
stamp(6); stamp(7)
stamp_flush(8)
I("s_endpgm")

a.label("L_ctrl")
I("s_setprio 3")
if not os.environ.get("NOPOLL"): poll(C_Q, 32, 3, 8, "L_cq", sleep=int(os.environ.get("CSLEEP", "2")))
stamp(1)
I("s_lshr_b32 s7, s5, 4"); I("s_lshl_b32 s7, s7, 14")
I("s_and_b32 s8, s5, 15"); I("s_lshl_b32 s8, s8, 10"); I("s_add_u32 s7, s7, s8"); I(f"s_add_u32 s7, s7, {WS_QP}")
I("v_lshlrev_b32 v3, 4, v2"); I("v_add_u32 v3, s7, v3")
for j in range(28):
    I(f"global_load_dwordx4 v[{8+4*j}:{11+4*j}], v3, {sp(P_WS)} sc1")
    if j < 27: I("v_add_u32 v3, 32768, v3")
I("s_waitcnt vmcnt(0)")
for j in range(1, 28):
    for k in range(4):
        I(f"v_add_f32 v{8+k}, v{8+k}, v{8+4*j+k}")
I("v_cvt_pk_bf16_f32 v8, v8, v9"); I("v_cvt_pk_bf16_f32 v9, v10, v11")
I("v_lshlrev_b32 v3, 3, v2")
I("ds_write_b64 v3, v[8:9]")
I("s_waitcnt lgkmcnt(0)")
stamp(2)
I("s_barrier")
I("s_branch L_b2")

a.label("L_service")
if os.environ.get("NOSERVICE"): I("s_endpgm")
LDS_A = 0
LDS_AP = 4096
LDS_ZERO = 6144
LDS_H = 6208
LDS_SC = 6272
LDS_X2 = 6656
LDS_A2 = 10240
LDS_RED = 10752
V_LN, V_SILU, V_X, V_K4, V_X2, V_G, V_I, V_AADDR = 24, 25, 26, 27, 28, 29, 30, 31
ACCS = list(range(64, 80))
AV = 80
stamp(0)
srd(44, P_WM, 448 * 2688 * 2)
srd(48, P_WQ, 448 * 4096 * 2)
srd(52, P_C, 1792)
srd(56, P_X, 1792)
I(f"v_lshrrev_b32 v{V_G}, 4, v2"); I(f"v_and_b32 v{V_I}, 15, v2")
Lhd = a.newlabel("L_nohead")
I("s_cmp_ge_u32 s2, 28"); I(f"s_cbranch_scc1 {Lhd}")
I("v_lshrrev_b32 v3, 2, v2")
I("s_lshl_b32 s4, s3, 5"); I("v_add_u32 v3, s4, v3")
I("v_mov_b32 v96, v3")
I("s_mov_b32 s5, 5376"); I("v_mul_lo_u32 v4, v3, s5")
I("v_bfe_u32 v5, v2, 1, 1"); I("v_mul_u32_u24 v5, 896, v5")
I("v_and_b32 v6, 1, v2"); I("v_lshlrev_b32 v6, 4, v6")
I("v_add3_u32 v4, v4, v5, v6")
I("s_lshl_b32 s6, s2, 5"); I("v_add_u32 v4, s6, v4")
I("s_mov_b32 s60, 86016")
I("buffer_load_dwordx4 v[100:103], v4, s[44:47], 0 offen")
I("buffer_load_dwordx4 v[104:107], v4, s[44:47], s60 offen")
a.label(Lhd)
I("v_lshlrev_b32 v6, 1, v0")
I("buffer_load_ushort v7, v6, s[52:55], 0 offen")
I(f"buffer_load_ushort v{V_X}, v6, s[56:59], 0 offen")
I("s_cmp_ge_u32 s3, 7"); I("s_cselect_b32 s7, 896, 0")
I("v_lshlrev_b32 v8, 4, v2"); I("v_add_u32 v8, s7, v8")
I("v_mov_b32 v9, 0x40000000"); I("v_cmp_gt_u32 vcc, 56, v2"); I("v_cndmask_b32 v8, v9, v8, vcc")
I("buffer_load_dwordx4 v[10:13], v8, s[56:59], 0 offen")
I("v_add_u32 v3, 64, v0")
I("v_cmp_gt_u32 vcc, 448, v0")
I(f"v_cndmask_b32 v{V_AADDR}, v3, v0, vcc")
I("v_subrev_u32 v3, 896, v0")
I("v_and_b32 v4, 63, v3"); I("v_lshrrev_b32 v3, 6, v3"); I("v_lshlrev_b32 v3, 9, v3")
I("v_add_u32 v3, v3, v4"); I("v_add_u32 v3, 448, v3")
I("v_cmp_gt_u32 vcc, 896, v0")
I(f"v_cndmask_b32 v{V_AADDR}, v3, v{V_AADDR}, vcc")
I("v_add_u32 v3, 2240, v0")
I("v_cmp_gt_u32 vcc, 448, v0")
I(f"v_cndmask_b32 v{V_K4}, v3, v0, vcc")
I(f"v_lshlrev_b32 v{V_K4}, 2, v{V_K4}")
I("v_mov_b32 v4, 0"); I("v_lshlrev_b32 v3, 2, v2")
I("v_cmp_gt_u32 vcc, 16, v2"); I("s_and_saveexec_b64 s[8:9], vcc")
I(f"ds_write_b32 v3, v4 offset:{LDS_ZERO}")
I("s_mov_b64 exec, s[8:9]")
I("s_barrier")
I(f"v_lshlrev_b32 v3, 2, v{V_G}"); I("s_lshl_b32 s4, s2, 4"); I("v_add_u32 v3, s4, v3")
I("v_lshlrev_b32 v4, 13, v3")
I(f"v_lshlrev_b32 v5, 4, v{V_I}"); I("s_lshl_b32 s6, s3, 9"); I("v_add3_u32 v4, v4, v5, s6")
WQ_R = 32
for blk in range(2):
    for jj in range(4):
        I(f"s_mov_b32 s61, {jj*8192}")
        r = WQ_R + 16 * blk + 4 * jj
        I(f"buffer_load_dwordx4 v[{r}:{r+3}], v4, s[48:51], s61 offen offset:{256*blk}")
if os.environ.get("FINE"): stamp(4)
I("s_waitcnt vmcnt(8)")
if os.environ.get("FINE"): stamp(5)
I("v_mov_b32 v64, -1"); I("v_mov_b32 v65, -1"); I("v_mov_b32 v66, -1"); I("v_mov_b32 v67, -1")
I("s_mul_i32 s4, s2, 12288"); I(f"s_add_u32 s4, s4, {WS_INIT}")
I("v_lshlrev_b32 v3, 4, v0"); I("v_add_u32 v3, s4, v3")
Lin = a.newlabel("L_noinit")
I("s_cmp_ge_u32 s3, 12"); I(f"s_cbranch_scc1 {Lin}")
I(f"global_store_dwordx4 v3, v[64:67], {sp(P_WS)} sc1")
a.label(Lin)
I("v_lshlrev_b32 v7, 16, v7")
I(f"v_lshlrev_b32 v{V_X}, 16, v{V_X}")
I(f"v_mul_f32 v8, {f32(-LOG2E)}, v7")
I("v_exp_f32 v8, v8")
I("v_add_f32 v8, 1.0, v8")
I("v_rcp_f32 v8, v8")
I("v_mul_f32 v8, v7, v8")
I(f"v_cvt_pk_bf16_f32 v{V_SILU}, v8, 0")
I(f"v_lshlrev_b32 v3, 2, v{V_AADDR}")
I(f"ds_write_b32 v3, v{V_SILU} offset:{LDS_A}")
def ln_stats(xs, t0, masked=False):
    s = t0
    I(f"v_add_f32 v{s}, v{xs[0]}, v{xs[1]}")
    for r in xs[2:]: I(f"v_add_f32 v{s}, v{s}, v{r}")
    allreduce16([s]); allreduce_swap([s], [t0 + 1], 16); allreduce_swap([s], [t0 + 1], 32)
    I(f"v_mul_f32 v{s}, {f32(1.0/448)}, v{s}")
    q = t0 + 2
    I(f"v_sub_f32 v{t0+1}, v{xs[0]}, v{s}")
    I(f"v_mul_f32 v{q}, v{t0+1}, v{t0+1}")
    for r in xs[1:]:
        I(f"v_sub_f32 v{t0+1}, v{r}, v{s}")
        I(f"v_fmac_f32 v{q}, v{t0+1}, v{t0+1}")
    if masked:
        I(f"v_cmp_gt_u32 vcc, 56, v2"); I(f"v_cndmask_b32 v{q}, 0, v{q}, vcc")
    allreduce16([q]); allreduce_swap([q], [t0 + 1], 16); allreduce_swap([q], [t0 + 1], 32)
    I(f"v_mul_f32 v{q}, {f32(1.0/448)}, v{q}")
    bf16r(s); bf16r(q)
    I(f"v_add_f32 v{q}, {f32(1e-5)}, v{q}"); bf16r(q)
    I(f"v_sqrt_f32 v{q}, v{q}"); bf16r(q)
    return s, q
def layernorm_elem(dst, x, mean, sd, t):
    I(f"v_sub_f32 v{dst}, v{x}, v{mean}"); bf16r(dst)
    I(f"v_rcp_f32 v{t}, v{sd}")
    I(f"v_mul_f32 v{dst}, v{dst}, v{t}"); bf16r(dst)
for k in range(4): I(f"v_and_b32 v{14+k}, 0xffff0000, v{10+k}")
for k in range(4): I(f"v_lshlrev_b32 v{10+k}, 16, v{10+k}")
mean, sd = ln_stats(list(range(10, 18)), 18, masked=True)
layernorm_elem(V_LN, V_X, mean, sd, 21)
Lx = a.newlabel("L_x")
I("s_cmp_ge_u32 s3, 14"); I(f"s_cbranch_scc1 {Lx}")
I("v_lshlrev_b32 v3, 2, v0")
I(f"ds_write_b32 v3, v{V_LN} offset:{LDS_X2}")
a.label(Lx)
I("s_waitcnt lgkmcnt(0)")
if os.environ.get("FINE"): stamp(6)
I("s_barrier")
stamp(1)
if os.environ.get("FINE"):
    stamp_flush(8); I("s_endpgm")
def gemv(arow_reg, astride_rows, abase, bstride, nload):
    I(f"v_lshlrev_b32 v3, 2, v{arow_reg}")
    for i in range(nload):
        for b in range(2):
            I(f"ds_read_b32 v{AV + 2*i + b}, v3 offset:{abase + b*bstride + i*astride_rows*4}")
    for r in ACCS: I(f"v_mov_b32 v{r}, 0")
    I("s_waitcnt lgkmcnt(0)")
def gemv_mac(wq, i, tmp):
    I(f"v_lshlrev_b32 v{tmp}, 16, v{AV+2*i}")
    I(f"v_lshlrev_b32 v{tmp+1}, 16, v{AV+2*i+1}")
    for r in range(4):
        for b in range(2):
            I(f"v_dot2_f32_bf16 v{ACCS[b*8+2*r]}, v{wq+r}, v{AV+2*i+b}, v{ACCS[b*8+2*r]}")
            I(f"v_dot2_f32_bf16 v{ACCS[b*8+2*r+1]}, v{wq+r}, v{tmp+b}, v{ACCS[b*8+2*r+1]}")
Lhd2 = a.newlabel("L_nohead2")
I("s_cmp_ge_u32 s2, 28"); I(f"s_cbranch_scc1 {Lhd2}")
gemv(96, 16, LDS_A, 2048, 2)
for i in range(2): gemv_mac(100 + 4 * i, i, 4)
r = treduce(ACCS, 5); r = treduce(r, 4); r = treduce(r, 3); r = treduce(r, 2)
I("s_lshl_b32 s4, s3, 8"); I("v_lshlrev_b32 v3, 2, v2"); I("v_add_u32 v3, s4, v3")
I(f"ds_write_b32 v3, v{r[0]} offset:{LDS_RED}")
I("s_waitcnt lgkmcnt(0)")
I("s_barrier")
Ls1 = a.newlabel("L_s1")
I("s_cmp_lg_u32 s3, 0"); I(f"s_cbranch_scc1 {Ls1}")
I("v_lshlrev_b32 v3, 2, v2")
for w in range(16): I(f"ds_read_b32 v{8+w}, v3 offset:{LDS_RED + 256*w}")
I("s_waitcnt lgkmcnt(0)")
for w in range(1, 16): I(f"v_add_f32 v8, v8, v{8+w}")
bf16r(8)
I("v_lshrrev_b32 v4, 5, v2"); I("v_lshlrev_b32 v4, 5, v4")
I("v_bfe_u32 v5, v2, 2, 3")
I("v_and_b32 v6, 3, v2"); I("v_lshlrev_b32 v6, 3, v6")
I("v_add3_u32 v4, v4, v5, v6"); I("v_lshlrev_b32 v4, 2, v4")
I(f"ds_write_b32 v4, v8 offset:{LDS_SC}")
I("s_waitcnt lgkmcnt(0)")
I(f"v_lshlrev_b32 v4, 7, v{V_G}"); I(f"v_lshlrev_b32 v5, 2, v{V_I}"); I("v_add_u32 v4, v4, v5")
I(f"ds_read_b32 v8, v4 offset:{LDS_SC}")
I(f"ds_read_b32 v9, v4 offset:{LDS_SC+64}")
I(f"v_mul_u32_u24 v6, 1792, v{V_G}"); I("s_lshl_b32 s4, s2, 6"); I("v_add3_u32 v6, v6, v5, s4")
I(f"ds_read_b32 v10, v6 offset:{LDS_X2}")
I("s_waitcnt lgkmcnt(0)")
I("v_add_f32 v9, 1.0, v9"); bf16r(9)
I("v_mul_f32 v9, v10, v9"); bf16r(9)
I("v_add_f32 v9, v9, v8")
I("v_cvt_pk_bf16_f32 v9, v9, v9")
I(f"v_lshlrev_b32 v4, 5, v{V_G}"); I(f"v_lshlrev_b32 v5, 1, v{V_I}"); I("v_add_u32 v4, v4, v5")
I("v_cmp_gt_u32 vcc, 32, v2"); I("s_and_saveexec_b64 s[8:9], vcc")
I(f"ds_write_b16 v4, v9 offset:{LDS_H}")
I("s_mov_b64 exec, s[8:9]")
I("s_waitcnt lgkmcnt(0)")
a.label(Ls1)
def tq(blk, e, r): return 64 + 16 * blk + 2 * e + r
I("s_waitcnt vmcnt(0)")
for blk in range(2):
    for e in range(8):
        for r in range(2):
            hi = WQ_R + 16 * blk + 4 * (2 * r + 1) + (e >> 1); lo = WQ_R + 16 * blk + 4 * (2 * r) + (e >> 1)
            I(f"v_perm_b32 v{tq(blk,e,r)}, v{hi}, v{lo}, " + ("s95" if e % 2 == 0 else "s96"))
I("s_barrier")
stamp(2)
I(f"v_lshlrev_b32 v4, 5, v{V_I}"); I(f"v_lshlrev_b32 v5, 3, v{V_G}"); I("v_add_u32 v4, v4, v5"); I(f"v_add_u32 v4, {LDS_H}, v4")
I(f"v_mov_b32 v5, {LDS_ZERO}"); I(f"v_cmp_gt_u32 vcc, 2, v{V_I}"); I("v_cndmask_b32 v4, v5, v4, vcc")
I("ds_read_b64 v[8:9], v4")
I("s_waitcnt lgkmcnt(0)")
def dq(blk, e):
    if blk == 0: return 32 + 4 * e
    return 64 + 4 * e if e < 4 else 96 + 4 * (e - 4)
for blk in range(2):
    for e in range(8):
        d = dq(blk, e)
        I(f"v_mfma_f32_16x16x16_bf16 v[{d}:{d+3}], v[8:9], v[{tq(blk,e,0)}:{tq(blk,e,1)}], 0")
I("s_lshl_b32 s4, s2, 15"); I("s_lshl_b32 s5, s3, 10"); I("s_add_u32 s4, s4, s5"); I(f"s_add_u32 s4, s4, {WS_QP}")
I(f"v_lshlrev_b32 v4, 5, v{V_I}"); I("v_add_u32 v4, s4, v4"); I("v_add_u32 v5, 16384, v4")
I("v_cmp_gt_u32 vcc, 16, v2"); I("s_and_saveexec_b64 s[8:9], vcc")
for blk in range(2):
    for b in range(2):
        tb = 8 if b == 0 else 16
        for e in range(8):
            I(f"v_mov_b32 v{tb+e}, v{dq(blk,e)+b}")
        ad = 4 if b == 0 else 5
        I(f"global_store_dwordx4 v{ad}, v[{tb}:{tb+3}], {sp(P_WS)} offset:{512*blk} sc1")
        I(f"global_store_dwordx4 v{ad}, v[{tb+4}:{tb+7}], {sp(P_WS)} offset:{512*blk+16} sc1")
I("s_mov_b64 exec, s[8:9]")
a.label(Lhd2)
I("s_waitcnt vmcnt(0)")
I("s_barrier")
Ls3 = a.newlabel("L_s3")
I("s_cmp_lg_u32 s3, 0"); I(f"s_cbranch_scc1 {Ls3}")
signal(C_Q, 4)
stamp(3)
a.label(Ls3)
if os.environ.get("HEADONLY"): I("s_endpgm")
Ls4 = a.newlabel("L_s4")
I("s_cmp_ge_u32 s2, 28"); I(f"s_cbranch_scc1 {Ls4}")
I("v_lshrrev_b32 v3, 3, v2"); I("s_lshl_b32 s4, s3, 5"); I("v_add_u32 v3, s4, v3")
I("v_mov_b32 v96, v3")
I("s_mov_b32 s5, 5376"); I("v_mul_lo_u32 v4, v3, s5")
I("v_and_b32 v5, 7, v2"); I("v_lshlrev_b32 v5, 4, v5")
I("s_lshl_b32 s6, s2, 7"); I("s_add_u32 s6, s6, 1792"); I("v_add3_u32 v4, v4, v5, s6")
for i in range(4):
    I(f"s_mov_b32 s61, {i*8*5376}")
    I(f"buffer_load_dwordx4 v[{32+4*i}:{35+4*i}], v4, s[44:47], s61 offen")
gemv(96, 8, LDS_A, 2048, 4)
I("s_waitcnt vmcnt(0)")
for i in range(4): gemv_mac(32 + 4 * i, i, 4)
r = treduce(ACCS, 5); r = treduce(r, 4); r = treduce(r, 3)
I("s_lshl_b32 s4, s3, 9"); I("v_lshlrev_b32 v3, 3, v2"); I("v_add_u32 v3, s4, v3")
I(f"ds_write_b64 v3, v[{r[0]}:{r[1]}] offset:{LDS_RED}")
I("s_waitcnt lgkmcnt(0)")
I("s_barrier")
Ls5 = a.newlabel("L_s5")
I("s_cmp_lg_u32 s3, 0"); I(f"s_cbranch_scc1 {Ls5}")
I("v_lshlrev_b32 v3, 3, v2")
for w in range(16): I(f"ds_read_b64 v[{32+2*w}:{33+2*w}], v3 offset:{LDS_RED + 512*w}")
I("s_waitcnt lgkmcnt(0)")
for w in range(1, 16):
    for k in range(2): I(f"v_add_f32 v{32+k}, v{32+k}, v{32+2*w+k}")
bf16r(32); bf16r(33)
I("v_lshrrev_b32 v4, 5, v2"); I("s_mov_b32 s5, 2688"); I("v_mul_lo_u32 v4, v4, s5")
I("v_bfe_u32 v5, v2, 3, 2"); I("v_lshlrev_b32 v5, 1, v5")
I("v_and_b32 v6, 7, v2"); I("v_lshlrev_b32 v6, 3, v6")
I("v_add3_u32 v4, v4, v5, v6")
I("s_lshl_b32 s5, s2, 6"); I("s_add_u32 s5, s5, 896"); I("v_add_u32 v4, s5, v4"); I("v_lshlrev_b32 v4, 2, v4")
I(f"global_store_dwordx2 v4, v[32:33], {sp(P_WS)} offset:{WS_MOD} sc1")
I("s_waitcnt vmcnt(0)")
signal(C_A2, 4)
a.label(Ls5)
a.label(Ls4)
stamp(4)
if os.environ.get("NOTAIL"): I("s_endpgm")
WO_T, WGU_T, WD_T = 32, 64, 96
RAW = 96
def load_rows8(rawbase, emit):
    for j in range(8): emit(j, rawbase + 4 * j)
def transpose8(rawbase, tbase):
    for e in range(8):
        for r in range(4):
            hi = rawbase + 4 * (2 * r + 1) + (e >> 1); lo = rawbase + 4 * (2 * r) + (e >> 1)
            I(f"v_perm_b32 v{tbase+4*e+r}, v{hi}, v{lo}, " + ("s95" if e % 2 == 0 else "s96"))
srd(44, P_WO, 4096 * 448 * 2)
srd(56, P_WD, 1792 * 448 * 2)
I("s_lshr_b32 s4, s2, 2"); I("s_and_b32 s5, s2, 3")
I(f"v_lshlrev_b32 v3, 3, v{V_G}"); I("s_lshl_b32 s6, s4, 9"); I("s_lshl_b32 s7, s3, 5"); I("s_add_u32 s6, s6, s7"); I("v_add_u32 v3, s6, v3")
I("s_movk_i32 s6, 896"); I("v_mul_lo_u32 v4, v3, s6")
I(f"v_lshlrev_b32 v6, 4, v{V_I}"); I("s_mul_i32 s6, s5, 224"); I("v_add3_u32 v4, v4, v6, s6")
I("v_mov_b32 v6, 0x40000000"); I(f"v_cmp_gt_u32 vcc, 14, v{V_I}"); I("v_cndmask_b32 v4, v6, v4, vcc")
load_rows8(RAW, lambda j, r: I(f"buffer_load_dwordx4 v[{r}:{r+3}], v4, s[44:47], 0 offen offset:{j*896}") if j * 896 <= 4095 else (I("s_mov_b32 s7, 3584"), I(f"buffer_load_dwordx4 v[{r}:{r+3}], v4, s[44:47], s7 offen offset:{j*896-3584}")))
I("s_waitcnt vmcnt(0)")
transpose8(RAW, WO_T)
I(f"v_lshlrev_b32 v3, 3, v{V_G}"); I("s_lshl_b32 s6, s3, 5"); I("v_add_u32 v3, s6, v3")
I("s_movk_i32 s6, 3584"); I("v_mul_lo_u32 v4, v3, s6")
I(f"v_and_b32 v5, 7, v{V_I}"); I("v_lshlrev_b32 v5, 4, v5"); I("s_lshl_b32 s6, s2, 7"); I("v_add3_u32 v4, v4, v5, s6")
I(f"v_cmp_gt_u32 vcc, 8, v{V_I}")
I(f"v_mov_b32 v5, s{P_WU}"); I(f"v_mov_b32 v6, s{P_WG}"); I("v_cndmask_b32 v8, v5, v6, vcc")
I(f"v_mov_b32 v5, s{P_WU+1}"); I(f"v_mov_b32 v6, s{P_WG+1}"); I("v_cndmask_b32 v9, v5, v6, vcc")
I("v_add_co_u32 v8, vcc, v8, v4"); I("v_addc_co_u32 v9, vcc, 0, v9, vcc")
Lgu = a.newlabel("L_nogu")
I("s_cmp_ge_u32 s2, 28"); I(f"s_cbranch_scc1 {Lgu}")
I("s_cmp_ge_u32 s3, 14"); I(f"s_cbranch_scc1 {Lgu}")
for j in range(8):
    I(f"global_load_dwordx4 v[{RAW+4*j}:{RAW+4*j+3}], v[8:9], off")
    if j < 7:
        I("v_add_co_u32 v8, vcc, 3584, v8"); I("v_addc_co_u32 v9, vcc, 0, v9, vcc")
I("s_waitcnt vmcnt(0)")
transpose8(RAW, WGU_T)
a.label(Lgu)
I("s_and_b32 s6, s3, 1"); I("s_lshl_b32 s6, s6, 5"); I("s_lshl_b32 s7, s2, 6"); I("s_add_u32 s6, s6, s7")
I(f"v_lshlrev_b32 v3, 3, v{V_G}"); I("v_add_u32 v3, s6, v3")
I("s_movk_i32 s6, 896"); I("v_mul_lo_u32 v4, v3, s6")
I("s_lshr_b32 s6, s3, 1"); I("s_lshl_b32 s6, s6, 8"); I(f"v_lshlrev_b32 v5, 4, v{V_I}"); I("v_add_u32 v5, s6, v5")
I("v_add_u32 v4, v4, v5")
I("v_mov_b32 v6, 0x40000000"); I("v_cmp_gt_u32 vcc, 896, v5"); I("v_cndmask_b32 v4, v6, v4, vcc")
def wdreg(j): return 96 + 4 * j
for j in range(8):
    r = wdreg(j)
    if j * 896 <= 4095: I(f"buffer_load_dwordx4 v[{r}:{r+3}], v4, s[56:59], 0 offen offset:{j*896}")
    else:
        I("s_mov_b32 s7, 3584"); I(f"buffer_load_dwordx4 v[{r}:{r+3}], v4, s[56:59], s7 offen offset:{j*896-3584}")
stamp(5)
Lt1 = a.newlabel("L_t1")
I("s_cmp_lg_u32 s3, 0"); I(f"s_cbranch_scc1 {Lt1}")
poll(C_Q, 32, 4, 8, "L_pq")
I("v_cmp_le_u32 vcc, 14, v2"); I("v_mov_b32 v5, 0"); I("v_mov_b32 v6, 98"); I("v_cndmask_b32 v5, v5, v6, vcc")
I("v_add_u32 v5, v5, v2"); I("s_mul_i32 s6, s4, 14"); I("v_add_u32 v5, s6, v5")
I("v_lshlrev_b32 v5, 3, v5"); I(f"v_add_u32 v5, {WS_PML}, v5")
I("v_cmp_gt_u32 vcc, 28, v2"); I("s_and_saveexec_b64 s[10:11], vcc")
validated_loads(lambda: I(f"global_load_dwordx2 v[6:7], v5, {sp(P_WS)} sc1"), [6, 7], 8, "L_pml", sleep=1)
I("s_mov_b64 exec, s[10:11]")
stamp(6)
a.label(Lt1)
I("s_barrier")
I("s_lshr_b32 s6, s3, 3"); I("s_lshl_b32 s6, s6, 4")
I("s_lshr_b32 s7, s3, 2"); I("s_and_b32 s7, s7, 1")
I("s_add_u32 s6, s6, s7"); I("s_lshl_b32 s7, s4, 1"); I("s_add_u32 s6, s6, s7")
I("s_mul_i32 s6, s6, 7")
I("s_lshl_b32 s7, s6, 10"); I(f"s_add_u32 s7, s7, {WS_PO}")
I("v_and_b32 v3, 255, v0"); I("v_lshlrev_b32 v3, 2, v3"); I("v_add_u32 v3, s7, v3")
I(f"s_add_u32 s12, s{P_WS}, 4096"); I(f"s_addc_u32 s13, s{P_WS+1}, 0")
I("s_lshl_b32 s7, s6, 3"); I(f"s_add_u32 s7, s7, {WS_PML}"); I("v_mov_b32 v4, s7")
def t1loads():
    for s_ in range(7):
        if s_ < 4: I(f"global_load_dword v{5+s_}, v3, {sp(P_WS)} offset:{1024*s_} sc1")
        else: I(f"global_load_dword v{5+s_}, v3, s[12:13] offset:{1024*(s_-4)} sc1")
    I(f"global_load_dwordx4 v[12:15], v4, {sp(P_WS)} sc1")
    I(f"global_load_dwordx4 v[16:19], v4, {sp(P_WS)} offset:16 sc1")
    I(f"global_load_dwordx4 v[20:23], v4, {sp(P_WS)} offset:32 sc1")
    I(f"global_load_dwordx2 v[24:25], v4, {sp(P_WS)} offset:48 sc1")
validated_loads(t1loads, list(range(5, 25 + 1)), 1, "L_po")
mreg = [12 + 2 * k for k in range(7)]; lreg = [13 + 2 * k for k in range(7)]
I("v_max3_f32 v1, v12, v14, v16"); I("v_max3_f32 v1, v1, v18, v20"); I("v_max3_f32 v1, v1, v22, v24")
for s_ in range(7): I(f"v_sub_f32 v{mreg[s_]}, v{mreg[s_]}, v1")
for s_ in range(7): I(f"v_exp_f32 v{mreg[s_]}, v{mreg[s_]}")
I(f"v_mul_f32 v1, v{mreg[0]}, v{lreg[0]}")
for s_ in range(1, 7): I(f"v_fmac_f32 v1, v{mreg[s_]}, v{lreg[s_]}")
I(f"v_mul_f32 v8, v{mreg[0]}, v5" if False else f"v_mul_f32 v4, v{mreg[0]}, v5")
for s_ in range(1, 7): I(f"v_fmac_f32 v4, v{mreg[s_]}, v{5+s_}")
I("v_rcp_f32 v1, v1")
I("v_mul_f32 v8, v4, v1")
I("v_cvt_pk_bf16_f32 v8, v8, v8")
I("v_lshlrev_b32 v3, 1, v0")
I(f"ds_write_b16 v3, v8 offset:{LDS_AP}")
I("s_waitcnt lgkmcnt(0)")
I("s_barrier")
def afrag(dst, k0reg_s, base, rowstride):
    I(f"v_mul_u32_u24 v4, {rowstride}, v{V_I}"); I(f"v_lshlrev_b32 v5, 4, v{V_G}"); I(f"v_add3_u32 v4, v4, v5, s{k0reg_s}")
    I(f"v_add_u32 v4, {base}, v4")
    I(f"v_mov_b32 v5, {LDS_ZERO}"); I(f"v_cmp_gt_u32 vcc, 2, v{V_I}"); I("v_cndmask_b32 v4, v5, v4, vcc")
    I(f"ds_read_b128 v[{dst}:{dst+3}], v4")
    I("s_waitcnt lgkmcnt(0)")
def mfma8(tb, afr, outfn):
    for e in range(8):
        d = outfn(e)
        I(f"v_mfma_f32_16x16x32_bf16 v[{d}:{d+3}], v[{afr}:{afr+3}], v[{tb+4*e}:{tb+4*e+3}], 0")
def red_write(dfn, sreg_off):
    I(f"v_lshlrev_b32 v4, 6, v{V_I}"); I(f"v_add_u32 v4, s{sreg_off}, v4")
    I("v_cmp_gt_u32 vcc, 16, v2"); I("s_and_saveexec_b64 s[8:9], vcc")
    for e in range(8):
        d = dfn(e)
        I(f"ds_write_b64 v4, v[{d}:{d+1}] offset:{LDS_RED + 8*e}")
    I("s_mov_b64 exec, s[8:9]")
    I("s_waitcnt lgkmcnt(0)")
I("s_lshl_b32 s6, s3, 6")
afrag(8, 6, LDS_AP, 1024)
def roll(tb): return lambda e: 12 if e == 0 else tb + 4 * (e - 1)
mfma8(WO_T, 8, roll(WO_T))
I("s_lshl_b32 s6, s3, 10")
red_write(roll(WO_T), 6)
I("s_barrier")
Lt2 = a.newlabel("L_t2")
I("s_cmp_ge_u32 s3, 4"); I(f"s_cbranch_scc1 {Lt2}")
I("v_lshlrev_b32 v3, 2, v0")
for w in range(16): I(f"ds_read_b32 v{32+w}, v3 offset:{LDS_RED + 1024*w}")
I("s_waitcnt lgkmcnt(0)")
for w in range(1, 16): I(f"v_add_f32 v32, v32, v{32+w}")
sanitize([32])
I("v_and_b32 v4, 1, v0"); I("v_mul_u32_u24 v4, 448, v4"); I("v_lshrrev_b32 v5, 1, v0")
I("s_mul_i32 s6, s4, 896"); I("s_mul_i32 s7, s5, 112"); I("s_add_u32 s6, s6, s7")
I("v_add3_u32 v4, v4, v5, s6"); I("v_lshlrev_b32 v4, 2, v4"); I(f"v_add_u32 v4, {WS_Y}, v4")
I("v_cmp_gt_u32 vcc, 112, v5"); I("s_and_saveexec_b64 s[8:9], vcc")
I(f"global_store_dword v4, v32, {sp(P_WS)} sc1")
I("s_mov_b64 exec, s[8:9]")
stamp(7)
a.label(Lt2)
I("s_cmp_ge_u32 s2, 28"); I("s_cbranch_scc1 L_end")
Lt3 = a.newlabel("L_t3")
I("s_cmp_lg_u32 s3, 15"); I(f"s_cbranch_scc1 {Lt3}")
poll(C_A2, 28, 4, 8, "L_pa2")
a.label(Lt3)
I("s_barrier")
Lt4 = a.newlabel("L_t4")
I("s_cmp_ge_u32 s3, 14"); I(f"s_cbranch_scc1 {Lt4}")
I(f"global_load_dword v16, v{V_K4}, {sp(P_WS)} offset:{WS_MOD+896*4} sc1")
I(f"v_add_u32 v4, {1344*4}, v{V_K4}")
I(f"global_load_dword v17, v4, {sp(P_WS)} offset:{WS_MOD} sc1")
I(f"global_load_dword v18, v4, {sp(P_WS)} offset:{WS_MOD+1792} sc1")
I("v_lshlrev_b32 v3, 2, v0"); I(f"v_add_u32 v3, {WS_Y}, v3")
I("v_add_u32 v4, 3584, v3"); I("v_add_u32 v5, 7168, v4"); I("v_add_u32 v6, 7168, v5"); I("v_add_u32 v7, 7168, v6")
def yloads():
    I(f"global_load_dword v8, v3, {sp(P_WS)} sc1")
    I(f"global_load_dword v9, v4, {sp(P_WS)} sc1"); I(f"global_load_dword v10, v4, {sp(P_WS)} offset:3584 sc1")
    I(f"global_load_dword v11, v5, {sp(P_WS)} sc1"); I(f"global_load_dword v12, v5, {sp(P_WS)} offset:3584 sc1")
    I(f"global_load_dword v13, v6, {sp(P_WS)} sc1"); I(f"global_load_dword v14, v6, {sp(P_WS)} offset:3584 sc1")
    I(f"global_load_dword v15, v7, {sp(P_WS)} sc1")
validated_loads(yloads, list(range(8, 16)), 19, "L_y")
stamp(8)
for kc in range(1, 8): I(f"v_add_f32 v8, v8, v{8+kc}")
bf16r(8)
I("v_mul_f32 v8, v16, v8"); bf16r(8)
I(f"v_add_f32 v{V_X2}, v{V_X}, v8"); bf16r(V_X2)
I("v_lshlrev_b32 v3, 2, v0")
I(f"ds_write_b32 v3, v{V_X2} offset:{LDS_X2}")
I("s_waitcnt lgkmcnt(0)")
a.label(Lt4)
I("s_barrier")
Lt5 = a.newlabel("L_t5")
I("s_cmp_ge_u32 s3, 14"); I(f"s_cbranch_scc1 {Lt5}")
I("s_cmp_ge_u32 s3, 7"); I("s_cselect_b32 s7, 1792, 0")
I("v_lshlrev_b32 v3, 2, v2"); I("v_add_u32 v3, s7, v3")
for i in range(7): I(f"ds_read_b32 v{8+i}, v3 offset:{LDS_X2 + 256*i}")
I("s_waitcnt lgkmcnt(0)")
mean, sd = ln_stats(list(range(8, 15)), 4)
layernorm_elem(15, V_X2, mean, sd, 16)
I("v_add_f32 v18, 1.0, v18"); bf16r(18)
I("v_mul_f32 v18, v15, v18"); bf16r(18)
I("v_add_f32 v18, v18, v17")
I("v_cvt_pk_bf16_f32 v18, v18, v18")
I(f"v_lshlrev_b32 v3, 1, v{V_AADDR}")
I(f"ds_write_b16 v3, v18 offset:{LDS_AP}")
I("s_waitcnt lgkmcnt(0)")
a.label(Lt5)
I("s_barrier")
Lt5b = a.newlabel("L_t5b")
I("s_cmp_ge_u32 s3, 14"); I(f"s_cbranch_scc1 {Lt5b}")
I("s_lshl_b32 s6, s3, 6")
afrag(8, 6, LDS_AP, 1024)
mfma8(WGU_T, 8, roll(WGU_T))
I("s_lshl_b32 s6, s3, 10")
red_write(roll(WGU_T), 6)
a.label(Lt5b)
I("s_barrier")
Lt6 = a.newlabel("L_t6")
I("s_cmp_ge_u32 s3, 2"); I(f"s_cbranch_scc1 {Lt6}")
I("v_lshlrev_b32 v3, 2, v0")
for w in range(14):
    I(f"ds_read_b32 v{32+w}, v3 offset:{LDS_RED + 1024*w}")
    I(f"ds_read_b32 v{48+w}, v3 offset:{LDS_RED + 1024*w + 512}")
I("s_waitcnt lgkmcnt(0)")
for w in range(1, 14):
    I(f"v_add_f32 v32, v32, v{32+w}"); I(f"v_add_f32 v48, v48, v{48+w}")
g, u = 32, 48
bf16r(g); bf16r(u)
I(f"v_mul_f32 v4, v{g}, v{g}")
I(f"v_mov_b32 v5, {f32(0.044715)}")
I("v_fma_f32 v4, v4, v5, 1.0")
I(f"v_mul_f32 v4, v4, v{g}")
I(f"v_mul_f32 v4, {f32(2 * 0.7978845608028654 * LOG2E)}, v4")
I("v_exp_f32 v4, v4")
I("v_add_f32 v4, 1.0, v4")
I("v_rcp_f32 v4, v4")
I("v_fma_f32 v4, v4, -2.0, 1.0")
I("v_add_f32 v4, 1.0, v4")
I(f"v_mul_f32 v4, v4, v{g}")
I("v_mul_f32 v4, 0.5, v4"); bf16r(4)
I(f"v_mul_f32 v4, v4, v{u}")
I("v_cvt_pk_bf16_f32 v4, v4, v4")
I("v_and_b32 v5, 1, v0"); I("v_lshlrev_b32 v5, 7, v5"); I("v_and_b32 v6, 0xfe, v0"); I("v_add_u32 v5, v5, v6")
I(f"ds_write_b16 v5, v4 offset:{LDS_A2}")
I("s_waitcnt lgkmcnt(0)")
a.label(Lt6)
for e in range(8):
    for r in range(4):
        I(f"v_perm_b32 v{64+4*e+r}, v{wdreg(2*r+1)+(e>>1)}, v{wdreg(2*r)+(e>>1)}, " + ("s95" if e % 2 == 0 else "s96"))
I("s_barrier")
Lt6b = a.newlabel("L_t6b")
I("s_cmp_ge_u32 s3, 8"); I(f"s_cbranch_scc1 {Lt6b}")
I("s_and_b32 s6, s3, 1"); I("s_lshl_b32 s6, s6, 6")
afrag(8, 6, LDS_A2, 128)
mfma8(64, 8, roll(64))
I("s_lshl_b32 s6, s3, 10")
red_write(roll(64), 6)
a.label(Lt6b)
I("s_barrier")
I("v_lshrrev_b32 v4, 8, v0"); I("v_lshlrev_b32 v4, 11, v4"); I("v_and_b32 v5, 255, v0"); I("v_lshlrev_b32 v6, 2, v5"); I("v_add_u32 v4, v4, v6")
I(f"ds_read_b32 v8, v4 offset:{LDS_RED}"); I(f"ds_read_b32 v9, v4 offset:{LDS_RED+1024}")
I("v_lshrrev_b32 v4, 8, v0"); I("v_lshlrev_b32 v4, 7, v4"); I("v_lshrrev_b32 v5, 1, v5"); I("v_add_u32 v4, v4, v5")
I("v_and_b32 v5, 1, v0"); I("v_mul_u32_u24 v5, 448, v5"); I("v_add_u32 v5, v5, v4")
I("s_mul_i32 s6, s2, 896"); I("v_add_u32 v5, s6, v5"); I("v_lshlrev_b32 v5, 2, v5"); I(f"v_add_u32 v5, {WS_Z}, v5")
I("s_waitcnt lgkmcnt(0)")
I("v_add_f32 v8, v8, v9")
sanitize([8])
I("v_cmp_gt_u32 vcc, 448, v4"); I("s_and_saveexec_b64 s[8:9], vcc")
I(f"global_store_dword v5, v8, {sp(P_WS)} sc1")
I("s_mov_b64 exec, s[8:9]")
stamp(9)
I("s_cmp_lg_u32 s3, 0"); I("s_cbranch_scc1 L_end")
I(f"v_and_b32 v4, 1, v{V_G}"); I("v_mul_u32_u24 v4, 448, v4")
I(f"s_lshl_b32 s6, s2, 4"); I(f"v_add3_u32 v4, v4, v{V_I}, s6")
I("v_lshlrev_b32 v5, 2, v4")
I(f"v_add_u32 v6, {WS_Z}, v5")
I(f"v_and_b32 v7, 1, v{V_G}"); I("v_mul_u32_u24 v7, 2240, v7"); I("s_movk_i32 s6, 2240"); I("v_add3_u32 v7, v7, v4, s6"); I("v_lshlrev_b32 v7, 2, v7")
I(f"global_load_dword v92, v7, {sp(P_WS)} offset:{WS_MOD} sc1")
I(f"ds_read_b32 v93, v5 offset:{LDS_X2}")
def zloads():
    I("v_mov_b32 v7, v6")
    for p in range(28):
        I(f"global_load_dword v{32+p}, v7, {sp(P_WS)} sc1")
        if p < 27: I("v_add_u32 v7, 3584, v7")
validated_loads(zloads, list(range(32, 60)), 8, "L_z")
I("s_waitcnt lgkmcnt(0)")
for p in range(1, 28): I(f"v_add_f32 v32, v32, v{32+p}")
bf16r(32)
I("v_mul_f32 v32, v92, v32"); bf16r(32)
I("v_add_f32 v32, v93, v32")
I("v_cvt_pk_bf16_f32 v32, v32, v32")
srd(44, P_OUT, 1792)
I("v_lshlrev_b32 v4, 1, v4")
I("v_cmp_gt_u32 vcc, 32, v2")
I("s_and_saveexec_b64 s[8:9], vcc")
I("buffer_store_short v32, v4, s[44:47], 0 offen")
I("s_mov_b64 exec, -1")
stamp(10)
stamp_flush(11)
a.label("L_end")
I("s_endpgm")
a.raw('.section .rodata,"a"'); a.raw(".p2align 6"); a.raw(f".amdhsa_kernel {NAME}")
a.raw("  .amdhsa_next_free_vgpr 128"); a.raw("  .amdhsa_next_free_sgpr 100"); a.raw("  .amdhsa_accum_offset 128")
a.raw("  .amdhsa_group_segment_fixed_size 0"); a.raw("  .amdhsa_kernarg_size 112"); a.raw("  .amdhsa_user_sgpr_count 2")
a.raw("  .amdhsa_user_sgpr_kernarg_segment_ptr 1"); a.raw("  .amdhsa_system_sgpr_workgroup_id_x 1"); a.raw(".end_amdhsa_kernel")
out = sys.argv[1] if len(sys.argv) > 1 else "adaLN_cond__mha_block_cached__geglu_ffn__decode.s"
open(out, "w").write(a.text())
print("wrote", out, len(a.lines), "lines")
```

```python
import struct, sys, os
from asmlib import Asm

NAME = "adaLN_cond__mha_block_cached__geglu_ffn__decode_kernel"
NT = os.environ.get("NT", "nt")
NSVC = 32
NWG = 256
WIN = int(os.environ.get("WIN", "0"))
STAMP = int(os.environ.get("STAMP", "0"))

def f32(x):
    return "0x%08x" % struct.unpack("<I", struct.pack("<f", x))[0]

LOG2E = 1.4426950408889634

WS_MOD = 0x0
WS_INIT = 0x10000
WS_PO = 0x10000
WS_PML = 0x48000
WS_Y = 0x49000
WS_Z = 0x50000
WS_QP = 0x80000
WS_ST = 0x200000
C_I = 8
C_A2 = 4
C_A = 8
WS_Q = 0x6A000

P_X, P_K, P_V, P_WQ, P_WO, P_BX, P_WG, P_WU, P_WD, P_C, P_WM, P_OUT, P_DBG, P_WS = [16 + 2 * i for i in range(14)]
def sp(p): return f"s[{p}:{p+1}]"

a = Asm()
I = a

def stamp(idx):
    if STAMP:
        I(f"s_memrealtime s[{66+2*idx}:{67+2*idx}]")
def stamp_flush(n):
    if not STAMP: return
    I("s_waitcnt lgkmcnt(0)")
    I("s_lshl_b32 s91, s2, 4"); I("s_add_u32 s91, s91, s3"); I("s_lshl_b32 s91, s91, 6"); I(f"s_add_u32 s91, s91, {WS_ST}")
    I("s_mov_b64 s[92:93], exec")
    I("s_mov_b64 exec, 1")
    I("v_mov_b32 v1, s91")
    for k in range(n):
        I(f"v_mov_b32 v3, s{66+2*k}")
        I(f"global_store_dword v1, v3, {sp(P_WS)} offset:{4*k}")
    I("s_mov_b64 exec, s[92:93]")

def srd(dst, ptr, nbytes):
    I(f"s_mov_b32 s{dst}, s{ptr}")
    I(f"s_and_b32 s{dst+1}, s{ptr+1}, 0xffff")
    I(f"s_mov_b32 s{dst+2}, {nbytes}")
    I(f"s_mov_b32 s{dst+3}, 0x20000")

def bf16r(v):
    I(f"v_cvt_pk_bf16_f32 v{v}, v{v}, v{v}")
    I(f"v_lshlrev_b32 v{v}, 16, v{v}")

def sanitize(regs):
    for r in regs:
        I(f"v_min_u32 v{r}, 0xfffffffe, v{r}" if False else f"v_min_u32 v{r}, s94, v{r}")

TMO = int(os.environ.get("TMO", "200000"))
def poll(off, target, vt, st, lab, sleep=1):
    L = a.newlabel(lab); D = a.newlabel(lab + "d")
    I(f"v_mov_b32 v{vt}, 0")
    I("s_mov_b32 s90, 0")
    a.label(L)
    I(f"global_load_dword v{vt+1}, v{vt}, {sp(P_DBG)} offset:{off} sc1")
    I("s_waitcnt vmcnt(0)")
    I(f"v_readfirstlane_b32 s{st}, v{vt+1}")
    I(f"s_cmp_ge_u32 s{st}, {target}")
    I(f"s_cbranch_scc1 {D}")
    I("s_add_u32 s90, s90, 1")
    I(f"s_cmp_ge_u32 s90, {TMO}")
    I(f"s_cbranch_scc1 {D}")
    I(f"s_sleep {sleep}")
    I(f"s_branch {L}")
    a.label(D)

def signal(off, vt):
    I(f"v_mov_b32 v{vt}, 0")
    I(f"v_mov_b32 v{vt+1}, 1")
    I("s_mov_b64 exec, 1")
    I(f"global_atomic_add v{vt}, v{vt+1}, {sp(P_DBG)} offset:{off} sc1")
    I("s_mov_b64 exec, -1")

def validated_loads(emit_loads, regs, tmp, lab, sleep=0):
    L = a.newlabel(lab); D = a.newlabel(lab + "d")
    I("s_mov_b32 s90, 0")
    a.label(L)
    emit_loads()
    I("s_waitcnt vmcnt(0)")
    rs = list(regs)
    if len(rs) == 1:
        I(f"v_mov_b32 v{tmp}, v{rs[0]}")
    else:
        I(f"v_max_u32 v{tmp}, v{rs[0]}, v{rs[1]}")
        k = 2
        while k < len(rs):
            if k + 1 < len(rs):
                I(f"v_max3_u32 v{tmp}, v{tmp}, v{rs[k]}, v{rs[k+1]}"); k += 2
            else:
                I(f"v_max_u32 v{tmp}, v{tmp}, v{rs[k]}"); k += 1
    I(f"v_cmp_eq_u32 vcc, -1, v{tmp}")
    I(f"s_cbranch_vccz {D}")
    I("s_add_u32 s90, s90, 1")
    I(f"s_cmp_ge_u32 s90, {TMO}")
    I(f"s_cbranch_scc1 {D}")
    if sleep: I(f"s_sleep {sleep}")
    I(f"s_branch {L}")
    a.label(D)

def allreduce16(regs, op="v_add_f32"):
    for perm in ("quad_perm:[1,0,3,2]", "quad_perm:[2,3,0,1]", "row_half_mirror", "row_mirror"):
        for r in regs:
            I(f"{op}_dpp v{r}, v{r}, v{r} {perm} row_mask:0xf bank_mask:0xf")

def allreduce_swap(regs, temps, which, op="v_add_f32"):
    for r, t in zip(regs, temps):
        I(f"v_mov_b32 v{t}, v{r}")
    for r, t in zip(regs, temps):
        I(f"v_permlane{which}_swap_b32 v{r}, v{t}")
    for r, t in zip(regs, temps):
        I(f"{op} v{r}, v{r}, v{t}")

def treduce(regs, bit):
    n = len(regs) // 2
    lo, hi = regs[:n], regs[n:]
    if bit in (5, 4):
        w = 32 if bit == 5 else 16
        for x, y in zip(lo, hi):
            I(f"v_permlane{w}_swap_b32 v{x}, v{y}")
        for x, y in zip(lo, hi):
            I(f"v_add_f32 v{x}, v{x}, v{y}")
    elif bit == 3:
        for x, y in zip(lo, hi):
            I(f"v_add_f32_dpp v{x}, v{x}, v{x} row_ror:8 row_mask:0xf bank_mask:0x3")
        for x, y in zip(lo, hi):
            I(f"v_add_f32_dpp v{x}, v{y}, v{y} row_ror:8 row_mask:0xf bank_mask:0xc")
    elif bit == 2:
        for x, y in zip(lo, hi):
            I(f"v_add_f32_dpp v{x}, v{x}, v{x} row_shl:4 row_mask:0xf bank_mask:0x5")
        for x, y in zip(lo, hi):
            I(f"v_add_f32_dpp v{x}, v{y}, v{y} row_shr:4 row_mask:0xf bank_mask:0xa")
    return lo

a.raw(f"; @launch grid=({NWG},1,1) block=(1024,1,1) lds=163840")
a.raw('.amdgcn_target "amdgcn-amd-amdhsa--gfx950"')
a.raw(".text"); a.raw(f".globl {NAME}"); a.raw(".p2align 8"); a.raw(f".type {NAME},@function"); a.raw(f"{NAME}:")
I(f"s_cmp_ge_u32 s2, {NWG}")
I("s_cbranch_scc1 L_end")
I("s_load_dwordx16 s[16:31], s[0:1], 0")
I("s_load_dwordx8 s[32:39], s[0:1], 64")
I("s_load_dwordx4 s[40:43], s[0:1], 96")
I("v_lshrrev_b32 v1, 6, v0")
I("v_and_b32 v2, 63, v0")
I("v_readfirstlane_b32 s3, v1")
I("s_mov_b32 s94, 0xfffffffe")
I("s_mov_b32 s95, 0x05040100")
I("s_mov_b32 s96, 0x07060302")
I("s_waitcnt lgkmcnt(0)")
I(f"s_cmp_lt_u32 s2, {NSVC}")
I("s_cbranch_scc1 L_service")

if os.environ.get("NOSTREAM"): I("s_endpgm")
NS = 20; NVP = 7; KB = 8; VB = 88; T0 = 116; ACC = 120; QR = 4
I(f"s_sub_u32 s4, s2, {NSVC}")
I("s_mul_i32 s5, s4, 9363"); I("s_lshr_b32 s5, s5, 16")
I("s_mul_i32 s6, s5, 7"); I("s_sub_u32 s6, s4, s6")
stamp(0)
I("s_cmp_eq_u32 s3, 15")
I("s_cbranch_scc1 L_ctrl")
srd(44, P_K, 0x4000000)
srd(48, P_V, 0x4000000)
I("s_mul_i32 s7, s6, 15"); I("s_add_u32 s7, s7, s3")
I("s_lshl_b32 s8, s7, 11")
I(f"s_mov_b32 s9, {(2**32 + 104)//105}")
I("s_mul_hi_u32 s10, s8, s9")
I("s_add_u32 s8, s8, 2048"); I("s_mul_hi_u32 s11, s8, s9")
I("s_sub_u32 s11, s11, s10")
I("s_lshl_b32 s12, s5, 21"); I("s_lshl_b32 s13, s10, 10"); I("s_add_u32 s12, s12, s13")
I("v_lshlrev_b32 v3, 4, v2"); I("v_add_u32 v1, s12, v3")
I("s_mov_b32 s60, 4096"); I("s_mov_b32 s61, 8192"); I("s_mov_b32 s62, 12288"); I("s_mov_b32 s63, 16384")
I("s_mov_b32 s64, 0x40000000"); I("s_mov_b32 s65, 0xff800000")
I("s_cmp_eq_u32 s11, 20"); I("s_cselect_b32 s64, s63, s64"); I("s_cselect_b32 s65, 0, s65")
so = {0: "0", 1: "s60", 2: "s61", 3: "s62", 4: "s63"}
issued = []
NPRE = int(os.environ.get("NPRE", "1000"))
b1_done = [False]
def maybe_b1():
    if not b1_done[0] and len(issued) >= NPRE:
        stamp(1)
        I("s_barrier")
        stamp(2)
        b1_done[0] = True
def sload(kind, i, reg):
    maybe_b1()
    s = so[i // 4] if i != NS - 1 else "s64"
    r = 44 if kind == "K" else 48
    I(f"buffer_load_dwordx4 v[{reg}:{reg+3}], v1, s[{r}:{r+3}], {s} offen offset:{(i%4)*1024} {NT}")
    issued.append((kind, i))
def swait(kind, i):
    idx = issued.index((kind, i))
    I(f"s_waitcnt vmcnt({len(issued) - 1 - idx})")
def throttle():
    if WIN and len(issued) >= WIN:
        I(f"s_waitcnt vmcnt({WIN-1})")
vreg = {}
NVL = 8
LDS_V = 33792
for i in range(NS):
    throttle(); sload("K", i, KB + 4 * i)
for i in range(NVP):
    vreg[i] = VB + 4 * i
    throttle(); sload("V", i, vreg[i])
I(f"s_lshl_b32 s14, s3, 13"); I(f"s_add_u32 s14, s14, {LDS_V}")
for i in range(NVP, NVP + NVL):
    throttle(); maybe_b1()
    I(f"s_add_u32 s15, s14, {(i - NVP) * 1024 - (i % 4) * 1024 + 4096}"); I("s_sub_u32 m0, s15, 4096")
    I("s_nop 0")
    I(f"buffer_load_dwordx4 v1, s[48:51], {so[i // 4]} offen offset:{(i%4)*1024} {NT} lds")
    issued.append(("V", i))
NPRE = 0; maybe_b1()
I("v_and_b32 v3, 31, v2"); I("v_lshlrev_b32 v3, 4, v3")
I(f"ds_read_b128 v[{QR}:{QR+3}], v3")
I("s_waitcnt lgkmcnt(0)")
nextv = NVP + NVL
for g0 in range(0, NS, 4):
    grp = list(range(g0, g0 + 4))
    swait("K", grp[-1])
    if g0 == 0:
        for r in range(4):
            I(f"v_dot2_f32_bf16 v{KB}, v{KB+r}, v{QR+r}, " + ("0" if r == 0 else f"v{KB}"))
    for r in range(4):
        for s in grp:
            if s == 0: continue
            d = KB + s
            src2 = "0" if r == 0 else f"v{d}"
            I(f"v_dot2_f32_bf16 v{d}, v{KB+4*s+r}, v{QR+r}, {src2}")
    for s in grp:
        if s >= 5 + NVL and nextv < NS:
            vreg[nextv] = KB + 4 * s
            sload("V", nextv, vreg[nextv]); nextv += 1
    ds = [KB + s for s in grp]
    allreduce16(ds)
    allreduce_swap(ds, [T0 + k for k in range(4)], 16)
    for d in ds: I(f"v_cvt_pk_bf16_f32 v{d}, v{d}, v{d}")
    for d in ds: I(f"v_lshlrev_b32 v{d}, 16, v{d}")
    for d in ds: I(f"v_mul_f32 v{d}, {f32(0.0625 * LOG2E)}, v{d}")
assert nextv == NS
stamp(3)
I(f"v_add_f32 v{KB+NS-1}, s65, v{KB+NS-1}")
M_, L_ = 4, 5
I(f"v_max3_f32 v{M_}, v{KB}, v{KB+1}, v{KB+2}")
for s in range(3, NS - 1, 2):
    I(f"v_max3_f32 v{M_}, v{M_}, v{KB+s}, v{KB+s+1}")
I(f"v_max_f32 v{M_}, v{M_}, v{KB+NS-1}")
for s in range(NS): I(f"v_sub_f32 v{KB+s}, v{KB+s}, v{M_}")
for s in range(NS): I(f"v_exp_f32 v{KB+s}, v{KB+s}")
I(f"v_add_f32 v{L_}, v{KB}, v{KB+1}")
for s in range(2, NS): I(f"v_add_f32 v{L_}, v{L_}, v{KB+s}")
for s in range(NS): I(f"v_cvt_pk_bf16_f32 v{KB+s}, v{KB+s}, 0")
for j in range(8): I(f"v_mov_b32 v{ACC+j}, 0")
I("v_lshlrev_b32 v6, 4, v2"); I("v_add_u32 v6, s14, v6")
for s in range(NS):
    if s == NVP - 2:
        swait("V", NVP + NVL - 1)
        for k in range(NVL):
            vreg[NVP + k] = KB + 4 * (5 + k)
            I(f"ds_read_b128 v[{vreg[NVP+k]}:{vreg[NVP+k]+3}], v6 offset:{1024*k}")
    if s == NVP:
        I("s_waitcnt lgkmcnt(0)")
    if not (NVP <= s < NVP + NVL):
        swait("V", s)
    t = T0 + (s & 1)
    I(f"v_lshlrev_b32 v{t}, 16, v{KB+s}")
    for r in range(4):
        I(f"v_dot2_f32_bf16 v{ACC+2*r}, v{vreg[s]+r}, v{KB+s}, v{ACC+2*r}")
        I(f"v_dot2_f32_bf16 v{ACC+2*r+1}, v{vreg[s]+r}, v{t}, v{ACC+2*r+1}")
stamp(4)
LDS_O = 1024; LDS_ML = 32768
I("v_lshrrev_b32 v6, 5, v2")
I("s_lshl_b32 s7, s3, 1")
I("v_add_u32 v6, s7, v6")
I("v_lshlrev_b32 v7, 10, v6")
I("v_and_b32 v3, 31, v2"); I("v_lshlrev_b32 v8, 5, v3"); I("v_add_u32 v7, v7, v8")
I(f"ds_write_b128 v7, v[{ACC}:{ACC+3}] offset:{LDS_O}")
I(f"ds_write_b128 v7, v[{ACC+4}:{ACC+7}] offset:{LDS_O+16}")
I("v_lshlrev_b32 v6, 3, v6")
I("v_cmp_eq_u32 vcc, 0, v3")
I("s_and_saveexec_b64 s[8:9], vcc")
I(f"ds_write_b64 v6, v[{M_}:{M_+1}] offset:{LDS_ML}")
I("s_mov_b64 exec, s[8:9]")
I("s_waitcnt lgkmcnt(0)")
a.label("L_b2")
I("s_barrier")
stamp(5)
I("s_cmp_ge_u32 s3, 4")
I("s_cbranch_scc1 L_send")
I("v_mov_b32 v1, 0")
for k in range(15):
    I(f"ds_read_b128 v[{8+4*k}:{11+4*k}], v1 offset:{LDS_ML+16*k}")
I("v_lshlrev_b32 v2, 2, v0")
for k in range(30):
    I(f"ds_read_b32 v{70+k}, v2 offset:{LDS_O+1024*k}")
I("s_waitcnt lgkmcnt(0)")
ms = [8 + 2 * k for k in range(30)]
I(f"v_max3_f32 v4, v{ms[0]}, v{ms[1]}, v{ms[2]}")
for k in range(3, 29, 2):
    I(f"v_max3_f32 v4, v4, v{ms[k]}, v{ms[k+1]}")
I(f"v_max_f32 v4, v4, v{ms[29]}")
for k in range(30): I(f"v_sub_f32 v{ms[k]}, v{ms[k]}, v4")
for k in range(30): I(f"v_exp_f32 v{ms[k]}, v{ms[k]}")
I("v_mov_b32 v5, 0"); I("v_mov_b32 v6, 0")
for k in range(30):
    I(f"v_fmac_f32 v5, v{ms[k]}, v{ms[k]+1}")
    I(f"v_fmac_f32 v6, v{ms[k]}, v{70+k}")
sanitize([4, 5, 6])
I("s_lshl_b32 s7, s4, 10")
I("v_add_u32 v2, s7, v2")
I(f"v_add_u32 v2, {WS_PO}, v2")
I(f"global_store_dword v2, v6, {sp(P_WS)} sc1")
I("s_lshl_b32 s7, s4, 3")
I(f"s_add_u32 s7, s7, {WS_PML}")
I("v_mov_b32 v3, s7")
I("v_cmp_eq_u32 vcc, 0, v0")
I("s_and_saveexec_b64 s[8:9], vcc")
I(f"global_store_dwordx2 v3, v[4:5], {sp(P_WS)} sc1")
I("s_mov_b64 exec, s[8:9]")
a.label("L_send")
stamp(6); stamp(7)
stamp_flush(8)
I("s_endpgm")

a.label("L_ctrl")
I("s_setprio 3")
poll(C_I, 32, 3, 8, "L_ci", sleep=4)
stamp(1)
I("s_lshl_b32 s7, s5, 9"); I(f"s_add_u32 s7, s7, {WS_Q}")
I("v_and_b32 v3, 31, v2"); I("v_lshlrev_b32 v3, 4, v3"); I("v_add_u32 v5, s7, v3")
validated_loads(lambda: I(f"global_load_dwordx4 v[8:11], v5, {sp(P_WS)} sc1"), [8, 9, 10, 11], 12, "L_cq", sleep=2)
I("ds_write_b128 v3, v[8:11]")
I("s_waitcnt lgkmcnt(0)")
stamp(2)
I("s_barrier")
I("s_branch L_b2")

a.label("L_service")
if os.environ.get("NOSERVICE"): I("s_endpgm")
if os.environ.get("SVCLD"):
    n = int(os.environ["SVCLD"]); pol = os.environ.get("SVCPOL", "")
    srd(48, P_WQ, 448 * 4096 * 2)
    I("s_lshl_b32 s4, s2, 4"); I("s_add_u32 s4, s4, s3"); I(f"s_mul_i32 s4, s4, {n*1024}")
    I("v_lshlrev_b32 v3, 4, v2"); I("v_add_u32 v3, s4, v3")
    for k in range(n):
        I(f"s_mov_b32 s5, {k*1024}")
        I(f"buffer_load_dwordx4 v[{32+4*k}:{35+4*k}], v3, s[48:51], s5 offen {pol}")
    I("s_waitcnt vmcnt(0)")
    I("s_endpgm")
LDS_A = 0
LDS_AP = 4096
LDS_ZERO = 6144
LDS_H = 6208
LDS_SC = 6272
LDS_X2 = 6656
LDS_A2 = 10240
LDS_RED = 10752
V_LN, V_SILU, V_X, V_K4, V_X2, V_G, V_I, V_AADDR = 24, 25, 26, 27, 28, 29, 30, 31
ACCS = list(range(64, 80))
AV = 80
stamp(0)
srd(44, P_WM, 0 if os.environ.get("NOWM") else 448 * 2688 * 2)
srd(48, P_WQ, 0 if os.environ.get("NOWQ") else 448 * 4096 * 2)
srd(52, P_C, 1792)
srd(56, P_X, 1792)
I(f"v_lshrrev_b32 v{V_G}, 4, v2"); I(f"v_and_b32 v{V_I}, 15, v2")
I("v_mov_b32 v64, -1"); I("v_mov_b32 v65, -1"); I("v_mov_b32 v66, -1"); I("v_mov_b32 v67, -1")
I("s_mul_i32 s4, s2, 12288"); I(f"s_add_u32 s4, s4, {WS_INIT}")
I("v_lshlrev_b32 v3, 4, v0"); I("v_add_u32 v3, s4, v3")
Lin = a.newlabel("L_noinit")
I("s_cmp_ge_u32 s3, 12"); I(f"s_cbranch_scc1 {Lin}")
if not os.environ.get("NOINIT"): I(f"global_store_dwordx4 v3, v[64:67], {sp(P_WS)} sc1")
a.label(Lin)
I("v_lshrrev_b32 v3, 2, v2")
I("s_lshl_b32 s4, s3, 5"); I("v_add_u32 v3, s4, v3")
I("v_mov_b32 v96, v3")
I("s_mov_b32 s5, 5376"); I("v_mul_lo_u32 v4, v3, s5")
I("v_and_b32 v5, 3, v2"); I("v_lshlrev_b32 v5, 4, v5")
I("s_lshl_b32 s6, s2, 6"); I("v_add3_u32 v4, v4, v5, s6")
I("s_mov_b32 s60, 86016")
I("buffer_load_dwordx4 v[100:103], v4, s[44:47], 0 offen")
I("buffer_load_dwordx4 v[104:107], v4, s[44:47], s60 offen")
I("v_lshlrev_b32 v6, 1, v0")
I("buffer_load_ushort v7, v6, s[52:55], 0 offen")
I(f"buffer_load_ushort v{V_X}, v6, s[56:59], 0 offen")
I("s_cmp_ge_u32 s3, 7"); I("s_cselect_b32 s7, 896, 0")
I("v_lshlrev_b32 v8, 4, v2"); I("v_add_u32 v8, s7, v8")
I("v_mov_b32 v9, 0x40000000"); I("v_cmp_gt_u32 vcc, 56, v2"); I("v_cndmask_b32 v8, v9, v8, vcc")
I("buffer_load_dwordx4 v[10:13], v8, s[56:59], 0 offen")
I("v_add_u32 v3, 64, v0")
I("v_cmp_gt_u32 vcc, 448, v0")
I(f"v_cndmask_b32 v{V_AADDR}, v3, v0, vcc")
I("v_subrev_u32 v3, 896, v0")
I("v_and_b32 v4, 63, v3"); I("v_lshrrev_b32 v3, 6, v3"); I("v_lshlrev_b32 v3, 9, v3")
I("v_add_u32 v3, v3, v4"); I("v_add_u32 v3, 448, v3")
I("v_cmp_gt_u32 vcc, 896, v0")
I(f"v_cndmask_b32 v{V_AADDR}, v3, v{V_AADDR}, vcc")
I("v_add_u32 v3, 2240, v0")
I("v_cmp_gt_u32 vcc, 448, v0")
I(f"v_cndmask_b32 v{V_K4}, v3, v0, vcc")
I(f"v_lshlrev_b32 v{V_K4}, 2, v{V_K4}")
I("v_mov_b32 v4, 0"); I("v_lshlrev_b32 v3, 2, v2")
I("v_cmp_gt_u32 vcc, 16, v2"); I("s_and_saveexec_b64 s[8:9], vcc")
I(f"ds_write_b32 v3, v4 offset:{LDS_ZERO}")
I("s_mov_b64 exec, s[8:9]")
I("s_barrier")
I(f"v_lshlrev_b32 v3, 3, v{V_G}"); I("s_lshl_b32 s4, s3, 5"); I("v_add_u32 v3, s4, v3")
I("v_lshlrev_b32 v4, 13, v3")
I(f"v_lshlrev_b32 v5, 4, v{V_I}"); I("s_lshl_b32 s6, s2, 8"); I("v_add3_u32 v4, v4, v5, s6")
WQ_R = 32
for jj in range(8):
    I(f"s_mov_b32 s61, {jj*8192}")
    I(f"buffer_load_dwordx4 v[{WQ_R+4*jj}:{WQ_R+4*jj+3}], v4, s[48:51], s61 offen")
if os.environ.get("FINE"): stamp(4)
I("s_waitcnt vmcnt(8)")
if os.environ.get("FINE"): stamp(5)
I("v_lshlrev_b32 v7, 16, v7")
I(f"v_lshlrev_b32 v{V_X}, 16, v{V_X}")
I(f"v_mul_f32 v8, {f32(-LOG2E)}, v7")
I("v_exp_f32 v8, v8")
I("v_add_f32 v8, 1.0, v8")
I("v_rcp_f32 v8, v8")
I("v_mul_f32 v8, v7, v8")
I(f"v_cvt_pk_bf16_f32 v{V_SILU}, v8, 0")
I(f"v_lshlrev_b32 v3, 2, v{V_AADDR}")
I(f"ds_write_b32 v3, v{V_SILU} offset:{LDS_A}")
def ln_stats(xs, t0, masked=False):
    s = t0
    I(f"v_add_f32 v{s}, v{xs[0]}, v{xs[1]}")
    for r in xs[2:]: I(f"v_add_f32 v{s}, v{s}, v{r}")
    allreduce16([s]); allreduce_swap([s], [t0 + 1], 16); allreduce_swap([s], [t0 + 1], 32)
    I(f"v_mul_f32 v{s}, {f32(1.0/448)}, v{s}")
    q = t0 + 2
    I(f"v_sub_f32 v{t0+1}, v{xs[0]}, v{s}")
    I(f"v_mul_f32 v{q}, v{t0+1}, v{t0+1}")
    for r in xs[1:]:
        I(f"v_sub_f32 v{t0+1}, v{r}, v{s}")
        I(f"v_fmac_f32 v{q}, v{t0+1}, v{t0+1}")
    if masked:
        I(f"v_cmp_gt_u32 vcc, 56, v2"); I(f"v_cndmask_b32 v{q}, 0, v{q}, vcc")
    allreduce16([q]); allreduce_swap([q], [t0 + 1], 16); allreduce_swap([q], [t0 + 1], 32)
    I(f"v_mul_f32 v{q}, {f32(1.0/448)}, v{q}")
    bf16r(s); bf16r(q)
    I(f"v_add_f32 v{q}, {f32(1e-5)}, v{q}"); bf16r(q)
    I(f"v_sqrt_f32 v{q}, v{q}"); bf16r(q)
    return s, q
def layernorm_elem(dst, x, mean, sd, t):
    I(f"v_sub_f32 v{dst}, v{x}, v{mean}"); bf16r(dst)
    I(f"v_rcp_f32 v{t}, v{sd}")
    I(f"v_mul_f32 v{dst}, v{dst}, v{t}"); bf16r(dst)
for k in range(4): I(f"v_and_b32 v{14+k}, 0xffff0000, v{10+k}")
for k in range(4): I(f"v_lshlrev_b32 v{10+k}, 16, v{10+k}")
mean, sd = ln_stats(list(range(10, 18)), 18, masked=True)
layernorm_elem(V_LN, V_X, mean, sd, 21)
Lx = a.newlabel("L_x")
I("s_cmp_ge_u32 s3, 14"); I(f"s_cbranch_scc1 {Lx}")
I("v_lshlrev_b32 v3, 2, v0")
I(f"ds_write_b32 v3, v{V_LN} offset:{LDS_X2}")
a.label(Lx)
I("s_waitcnt lgkmcnt(0)")
if os.environ.get("FINE"): stamp(6)
I("s_barrier")
stamp(1)
if os.environ.get("FINE"):
    stamp_flush(8); I("s_endpgm")
def gemv(arow_reg, astride_rows, abase, bstride, nload):
    I(f"v_lshlrev_b32 v3, 2, v{arow_reg}")
    for i in range(nload):
        for b in range(2):
            I(f"ds_read_b32 v{AV + 2*i + b}, v3 offset:{abase + b*bstride + i*astride_rows*4}")
    for r in ACCS: I(f"v_mov_b32 v{r}, 0")
    I("s_waitcnt lgkmcnt(0)")
def gemv_mac(wq, i, tmp):
    I(f"v_lshlrev_b32 v{tmp}, 16, v{AV+2*i}")
    I(f"v_lshlrev_b32 v{tmp+1}, 16, v{AV+2*i+1}")
    for r in range(4):
        for b in range(2):
            I(f"v_dot2_f32_bf16 v{ACCS[b*8+2*r]}, v{wq+r}, v{AV+2*i+b}, v{ACCS[b*8+2*r]}")
            I(f"v_dot2_f32_bf16 v{ACCS[b*8+2*r+1]}, v{wq+r}, v{tmp+b}, v{ACCS[b*8+2*r+1]}")
gemv(96, 16, LDS_A, 2048, 2)
for i in range(2): gemv_mac(100 + 4 * i, i, 4)
r = treduce(ACCS, 5); r = treduce(r, 4); r = treduce(r, 3); r = treduce(r, 2)
I("s_lshl_b32 s4, s3, 8"); I("v_lshlrev_b32 v3, 2, v2"); I("v_add_u32 v3, s4, v3")
I(f"ds_write_b32 v3, v{r[0]} offset:{LDS_RED}")
I("s_waitcnt lgkmcnt(0)")
I("s_barrier")
Ls1 = a.newlabel("L_s1")
I("s_cmp_lg_u32 s3, 0"); I(f"s_cbranch_scc1 {Ls1}")
I("v_lshlrev_b32 v3, 2, v2")
for w in range(16): I(f"ds_read_b32 v{8+w}, v3 offset:{LDS_RED + 256*w}")
I("s_waitcnt lgkmcnt(0)")
for w in range(1, 16): I(f"v_add_f32 v8, v8, v{8+w}")
bf16r(8)
I("v_lshrrev_b32 v4, 5, v2"); I("s_mov_b32 s5, 2688"); I("v_mul_lo_u32 v4, v4, s5")
I("v_bfe_u32 v5, v2, 2, 3")
I("v_and_b32 v6, 3, v2"); I("v_lshlrev_b32 v6, 3, v6")
I("v_add3_u32 v4, v4, v5, v6")
I("s_lshl_b32 s5, s2, 5"); I("v_add_u32 v4, s5, v4"); I("v_lshlrev_b32 v4, 2, v4")
I(f"global_store_dword v4, v8, {sp(P_WS)} offset:{WS_MOD} sc1")
I("s_waitcnt vmcnt(0)")
signal(C_A, 4)
stamp(2)
poll(C_A, 32, 4, 8, "L_pa")
a.label(Ls1)
I("s_waitcnt vmcnt(0)")
for e in range(8):
    for r in range(4):
        hi = WQ_R + 4 * (2 * r + 1) + (e >> 1); lo = WQ_R + 4 * (2 * r) + (e >> 1)
        I(f"v_perm_b32 v{64+4*e+r}, v{hi}, v{lo}, " + ("s95" if e % 2 == 0 else "s96"))
I("s_barrier")
Ls2 = a.newlabel("L_s2")
I("s_cmp_ge_u32 s3, 14"); I(f"s_cbranch_scc1 {Ls2}")
I(f"global_load_dword v4, v{V_K4}, {sp(P_WS)} offset:{WS_MOD} sc1")
I(f"global_load_dword v5, v{V_K4}, {sp(P_WS)} offset:{WS_MOD+1792} sc1")
I("s_waitcnt vmcnt(0)")
I("v_add_f32 v5, 1.0, v5"); bf16r(5)
I(f"v_mul_f32 v5, v{V_LN}, v5"); bf16r(5)
I("v_add_f32 v5, v5, v4")
I("v_cvt_pk_bf16_f32 v5, v5, v5")
I(f"v_lshlrev_b32 v3, 1, v{V_AADDR}")
I(f"ds_write_b16 v3, v5 offset:{LDS_AP}")
I("s_waitcnt lgkmcnt(0)")
a.label(Ls2)
I("s_barrier")
def afrag(dst, k0reg_s, base, rowstride):
    I(f"v_mul_u32_u24 v4, {rowstride}, v{V_I}"); I(f"v_lshlrev_b32 v5, 4, v{V_G}"); I(f"v_add3_u32 v4, v4, v5, s{k0reg_s}")
    I(f"v_add_u32 v4, {base}, v4")
    I(f"v_mov_b32 v5, {LDS_ZERO}"); I(f"v_cmp_gt_u32 vcc, 2, v{V_I}"); I("v_cndmask_b32 v4, v5, v4, vcc")
    I(f"ds_read_b128 v[{dst}:{dst+3}], v4")
    I("s_waitcnt lgkmcnt(0)")
def mfma8(tb, afr, outfn):
    for e in range(8):
        d = outfn(e)
        I(f"v_mfma_f32_16x16x32_bf16 v[{d}:{d+3}], v[{afr}:{afr+3}], v[{tb+4*e}:{tb+4*e+3}], 0")
def red_write(dfn, sreg_off):
    I(f"v_lshlrev_b32 v4, 6, v{V_I}"); I(f"v_add_u32 v4, s{sreg_off}, v4")
    I("v_cmp_gt_u32 vcc, 16, v2"); I("s_and_saveexec_b64 s[8:9], vcc")
    for e in range(8):
        d = dfn(e)
        I(f"ds_write_b64 v4, v[{d}:{d+1}] offset:{LDS_RED + 8*e}")
    I("s_mov_b64 exec, s[8:9]")
    I("s_waitcnt lgkmcnt(0)")
def roll(tb): return lambda e: 12 if e == 0 else tb + 4 * (e - 1)
Ls2b = a.newlabel("L_s2b")
I("s_cmp_ge_u32 s3, 14"); I(f"s_cbranch_scc1 {Ls2b}")
I("s_lshl_b32 s6, s3, 6")
afrag(8, 6, LDS_AP, 1024)
mfma8(64, 8, roll(64))
I("s_lshl_b32 s6, s3, 10")
red_write(roll(64), 6)
a.label(Ls2b)
I("s_barrier")
Ls3 = a.newlabel("L_s3")
I("s_cmp_ge_u32 s3, 4"); I(f"s_cbranch_scc1 {Ls3}")
I("v_lshlrev_b32 v3, 2, v0")
for w in range(14): I(f"ds_read_b32 v{32+w}, v3 offset:{LDS_RED + 1024*w}")
I("s_waitcnt lgkmcnt(0)")
for w in range(1, 14): I(f"v_add_f32 v32, v32, v{32+w}")
I("v_mov_b32_dpp v33, v32 quad_perm:[2,3,2,3] row_mask:0xf bank_mask:0xf")
I("v_cvt_pk_bf16_f32 v32, v32, v33")
sanitize([32])
I("v_and_b32 v4, 1, v0"); I("v_lshlrev_b32 v4, 13, v4"); I("v_lshrrev_b32 v5, 1, v0"); I("v_lshlrev_b32 v5, 1, v5")
I("s_lshl_b32 s6, s2, 8"); I(f"s_add_u32 s6, s6, {WS_Q}"); I("v_add3_u32 v4, v4, v5, s6")
I("v_and_b32 v5, 2, v0"); I("v_cmp_eq_u32 vcc, 0, v5"); I("s_and_saveexec_b64 s[8:9], vcc")
I(f"global_store_dword v4, v32, {sp(P_WS)} sc1")
I("s_mov_b64 exec, s[8:9]")
stamp(3)
a.label(Ls3)
if os.environ.get("HEADONLY"): I("s_endpgm")
Ls4 = a.newlabel("L_s4")
I("s_cmp_ge_u32 s2, 26"); I(f"s_cbranch_scc1 {Ls4}")
I("v_lshrrev_b32 v3, 3, v2"); I("s_lshl_b32 s4, s3, 5"); I("v_add_u32 v3, s4, v3")
I("v_mov_b32 v96, v3")
I("s_mov_b32 s5, 5376"); I("v_mul_lo_u32 v4, v3, s5")
I("v_and_b32 v5, 7, v2"); I("v_lshlrev_b32 v5, 4, v5")
I("s_lshl_b32 s6, s2, 7"); I("s_add_u32 s6, s6, 2048"); I("v_add3_u32 v4, v4, v5, s6")
for i in range(4):
    I(f"s_mov_b32 s61, {i*8*5376}")
    I(f"buffer_load_dwordx4 v[{32+4*i}:{35+4*i}], v4, s[44:47], s61 offen")
gemv(96, 8, LDS_A, 2048, 4)
I("s_waitcnt vmcnt(0)")
for i in range(4): gemv_mac(32 + 4 * i, i, 4)
r = treduce(ACCS, 5); r = treduce(r, 4); r = treduce(r, 3)
I("s_lshl_b32 s4, s3, 9"); I("v_lshlrev_b32 v3, 3, v2"); I("v_add_u32 v3, s4, v3")
I(f"ds_write_b64 v3, v[{r[0]}:{r[1]}] offset:{LDS_RED}")
I("s_waitcnt lgkmcnt(0)")
I("s_barrier")
Ls5 = a.newlabel("L_s5")
I("s_cmp_lg_u32 s3, 0"); I(f"s_cbranch_scc1 {Ls5}")
I("v_lshlrev_b32 v3, 3, v2")
for w in range(16): I(f"ds_read_b64 v[{32+2*w}:{33+2*w}], v3 offset:{LDS_RED + 512*w}")
I("s_waitcnt lgkmcnt(0)")
for w in range(1, 16):
    for k in range(2): I(f"v_add_f32 v{32+k}, v{32+k}, v{32+2*w+k}")
bf16r(32); bf16r(33)
I("v_lshrrev_b32 v4, 5, v2"); I("s_mov_b32 s5, 2688"); I("v_mul_lo_u32 v4, v4, s5")
I("v_bfe_u32 v5, v2, 3, 2"); I("v_lshlrev_b32 v5, 1, v5")
I("v_and_b32 v6, 7, v2"); I("v_lshlrev_b32 v6, 3, v6")
I("v_add3_u32 v4, v4, v5, v6")
I("s_lshl_b32 s5, s2, 6"); I("s_add_u32 s5, s5, 1024"); I("v_add_u32 v4, s5, v4"); I("v_lshlrev_b32 v4, 2, v4")
I(f"global_store_dwordx2 v4, v[32:33], {sp(P_WS)} offset:{WS_MOD} sc1")
I("s_waitcnt vmcnt(0)")
signal(C_A2, 4)
a.label(Ls5)
a.label(Ls4)
stamp(4)
if os.environ.get("NOTAIL"): I("s_endpgm")
WO_T, WGU_T, WD_T = 32, 64, 96
RAW = 96
def load_rows8(rawbase, emit):
    for j in range(8): emit(j, rawbase + 4 * j)
def transpose8(rawbase, tbase):
    for e in range(8):
        for r in range(4):
            hi = rawbase + 4 * (2 * r + 1) + (e >> 1); lo = rawbase + 4 * (2 * r) + (e >> 1)
            I(f"v_perm_b32 v{tbase+4*e+r}, v{hi}, v{lo}, " + ("s95" if e % 2 == 0 else "s96"))
srd(44, P_WO, 4096 * 448 * 2)
srd(56, P_WD, 1792 * 448 * 2)
I("s_lshr_b32 s4, s2, 2"); I("s_and_b32 s5, s2, 3")
I(f"v_lshlrev_b32 v3, 3, v{V_G}"); I("s_lshl_b32 s6, s4, 9"); I("s_lshl_b32 s7, s3, 5"); I("s_add_u32 s6, s6, s7"); I("v_add_u32 v3, s6, v3")
I("s_movk_i32 s6, 896"); I("v_mul_lo_u32 v4, v3, s6")
I(f"v_lshlrev_b32 v6, 4, v{V_I}"); I("s_mul_i32 s6, s5, 224"); I("v_add3_u32 v4, v4, v6, s6")
I("v_mov_b32 v6, 0x40000000"); I(f"v_cmp_gt_u32 vcc, 14, v{V_I}"); I("v_cndmask_b32 v4, v6, v4, vcc")
load_rows8(RAW, lambda j, r: I(f"buffer_load_dwordx4 v[{r}:{r+3}], v4, s[44:47], 0 offen offset:{j*896}") if j * 896 <= 4095 else (I("s_mov_b32 s7, 3584"), I(f"buffer_load_dwordx4 v[{r}:{r+3}], v4, s[44:47], s7 offen offset:{j*896-3584}")))
I("s_waitcnt vmcnt(0)")
transpose8(RAW, WO_T)
I(f"v_lshlrev_b32 v3, 3, v{V_G}"); I("s_lshl_b32 s6, s3, 5"); I("v_add_u32 v3, s6, v3")
I("s_movk_i32 s6, 3584"); I("v_mul_lo_u32 v4, v3, s6")
I(f"v_and_b32 v5, 7, v{V_I}"); I("v_lshlrev_b32 v5, 4, v5"); I("s_lshl_b32 s6, s2, 7"); I("v_add3_u32 v4, v4, v5, s6")
I(f"v_cmp_gt_u32 vcc, 8, v{V_I}")
I(f"v_mov_b32 v5, s{P_WU}"); I(f"v_mov_b32 v6, s{P_WG}"); I("v_cndmask_b32 v8, v5, v6, vcc")
I(f"v_mov_b32 v5, s{P_WU+1}"); I(f"v_mov_b32 v6, s{P_WG+1}"); I("v_cndmask_b32 v9, v5, v6, vcc")
I("v_add_co_u32 v8, vcc, v8, v4"); I("v_addc_co_u32 v9, vcc, 0, v9, vcc")
Lgu = a.newlabel("L_nogu")
I("s_cmp_ge_u32 s2, 28"); I(f"s_cbranch_scc1 {Lgu}")
I("s_cmp_ge_u32 s3, 14"); I(f"s_cbranch_scc1 {Lgu}")
for j in range(8):
    I(f"global_load_dwordx4 v[{RAW+4*j}:{RAW+4*j+3}], v[8:9], off")
    if j < 7:
        I("v_add_co_u32 v8, vcc, 3584, v8"); I("v_addc_co_u32 v9, vcc, 0, v9, vcc")
I("s_waitcnt vmcnt(0)")
transpose8(RAW, WGU_T)
a.label(Lgu)
I("s_and_b32 s6, s3, 1"); I("s_lshl_b32 s6, s6, 5"); I("s_lshl_b32 s7, s2, 6"); I("s_add_u32 s6, s6, s7")
I(f"v_lshlrev_b32 v3, 3, v{V_G}"); I("v_add_u32 v3, s6, v3")
I("s_movk_i32 s6, 896"); I("v_mul_lo_u32 v4, v3, s6")
I("s_lshr_b32 s6, s3, 1"); I("s_lshl_b32 s6, s6, 8"); I(f"v_lshlrev_b32 v5, 4, v{V_I}"); I("v_add_u32 v5, s6, v5")
I("v_add_u32 v4, v4, v5")
I("v_mov_b32 v6, 0x40000000"); I("v_cmp_gt_u32 vcc, 896, v5"); I("v_cndmask_b32 v4, v6, v4, vcc")
def wdreg(j): return 96 + 4 * j
for j in range(8):
    r = wdreg(j)
    if j * 896 <= 4095: I(f"buffer_load_dwordx4 v[{r}:{r+3}], v4, s[56:59], 0 offen offset:{j*896}")
    else:
        I("s_mov_b32 s7, 3584"); I(f"buffer_load_dwordx4 v[{r}:{r+3}], v4, s[56:59], s7 offen offset:{j*896-3584}")
stamp(5)
Lt1 = a.newlabel("L_t1")
I("s_cmp_lg_u32 s3, 0"); I(f"s_cbranch_scc1 {Lt1}")
poll(C_I, 32, 4, 8, "L_pq")
I("v_cmp_le_u32 vcc, 14, v2"); I("v_mov_b32 v5, 0"); I("v_mov_b32 v6, 98"); I("v_cndmask_b32 v5, v5, v6, vcc")
I("v_add_u32 v5, v5, v2"); I("s_mul_i32 s6, s4, 14"); I("v_add_u32 v5, s6, v5")
I("v_lshlrev_b32 v5, 3, v5"); I(f"v_add_u32 v5, {WS_PML}, v5")
I("v_cmp_gt_u32 vcc, 28, v2"); I("s_and_saveexec_b64 s[10:11], vcc")
validated_loads(lambda: I(f"global_load_dwordx2 v[6:7], v5, {sp(P_WS)} sc1"), [6, 7], 8, "L_pml", sleep=1)
I("s_mov_b64 exec, s[10:11]")
stamp(6)
a.label(Lt1)
I("s_barrier")
I("s_lshr_b32 s6, s3, 3"); I("s_lshl_b32 s6, s6, 4")
I("s_lshr_b32 s7, s3, 2"); I("s_and_b32 s7, s7, 1")
I("s_add_u32 s6, s6, s7"); I("s_lshl_b32 s7, s4, 1"); I("s_add_u32 s6, s6, s7")
I("s_mul_i32 s6, s6, 7")
I("s_lshl_b32 s7, s6, 10"); I(f"s_add_u32 s7, s7, {WS_PO}")
I("v_and_b32 v3, 255, v0"); I("v_lshlrev_b32 v3, 2, v3"); I("v_add_u32 v3, s7, v3")
I(f"s_add_u32 s12, s{P_WS}, 4096"); I(f"s_addc_u32 s13, s{P_WS+1}, 0")
I("s_lshl_b32 s7, s6, 3"); I(f"s_add_u32 s7, s7, {WS_PML}"); I("v_mov_b32 v4, s7")
def t1loads():
    for s_ in range(7):
        if s_ < 4: I(f"global_load_dword v{5+s_}, v3, {sp(P_WS)} offset:{1024*s_} sc1")
        else: I(f"global_load_dword v{5+s_}, v3, s[12:13] offset:{1024*(s_-4)} sc1")
    I(f"global_load_dwordx4 v[12:15], v4, {sp(P_WS)} sc1")
    I(f"global_load_dwordx4 v[16:19], v4, {sp(P_WS)} offset:16 sc1")
    I(f"global_load_dwordx4 v[20:23], v4, {sp(P_WS)} offset:32 sc1")
    I(f"global_load_dwordx2 v[24:25], v4, {sp(P_WS)} offset:48 sc1")
validated_loads(t1loads, list(range(5, 25 + 1)), 1, "L_po")
mreg = [12 + 2 * k for k in range(7)]; lreg = [13 + 2 * k for k in range(7)]
I("v_max3_f32 v1, v12, v14, v16"); I("v_max3_f32 v1, v1, v18, v20"); I("v_max3_f32 v1, v1, v22, v24")
for s_ in range(7): I(f"v_sub_f32 v{mreg[s_]}, v{mreg[s_]}, v1")
for s_ in range(7): I(f"v_exp_f32 v{mreg[s_]}, v{mreg[s_]}")
I(f"v_mul_f32 v1, v{mreg[0]}, v{lreg[0]}")
for s_ in range(1, 7): I(f"v_fmac_f32 v1, v{mreg[s_]}, v{lreg[s_]}")
I(f"v_mul_f32 v8, v{mreg[0]}, v5" if False else f"v_mul_f32 v4, v{mreg[0]}, v5")
for s_ in range(1, 7): I(f"v_fmac_f32 v4, v{mreg[s_]}, v{5+s_}")
I("v_rcp_f32 v1, v1")
I("v_mul_f32 v8, v4, v1")
I("v_cvt_pk_bf16_f32 v8, v8, v8")
I("v_lshlrev_b32 v3, 1, v0")
I(f"ds_write_b16 v3, v8 offset:{LDS_AP}")
I("s_waitcnt lgkmcnt(0)")
I("s_barrier")
def afrag(dst, k0reg_s, base, rowstride):
    I(f"v_mul_u32_u24 v4, {rowstride}, v{V_I}"); I(f"v_lshlrev_b32 v5, 4, v{V_G}"); I(f"v_add3_u32 v4, v4, v5, s{k0reg_s}")
    I(f"v_add_u32 v4, {base}, v4")
    I(f"v_mov_b32 v5, {LDS_ZERO}"); I(f"v_cmp_gt_u32 vcc, 2, v{V_I}"); I("v_cndmask_b32 v4, v5, v4, vcc")
    I(f"ds_read_b128 v[{dst}:{dst+3}], v4")
    I("s_waitcnt lgkmcnt(0)")
def mfma8(tb, afr, outfn):
    for e in range(8):
        d = outfn(e)
        I(f"v_mfma_f32_16x16x32_bf16 v[{d}:{d+3}], v[{afr}:{afr+3}], v[{tb+4*e}:{tb+4*e+3}], 0")
def red_write(dfn, sreg_off):
    I(f"v_lshlrev_b32 v4, 6, v{V_I}"); I(f"v_add_u32 v4, s{sreg_off}, v4")
    I("v_cmp_gt_u32 vcc, 16, v2"); I("s_and_saveexec_b64 s[8:9], vcc")
    for e in range(8):
        d = dfn(e)
        I(f"ds_write_b64 v4, v[{d}:{d+1}] offset:{LDS_RED + 8*e}")
    I("s_mov_b64 exec, s[8:9]")
    I("s_waitcnt lgkmcnt(0)")
I("s_lshl_b32 s6, s3, 6")
afrag(8, 6, LDS_AP, 1024)
def roll(tb): return lambda e: 12 if e == 0 else tb + 4 * (e - 1)
mfma8(WO_T, 8, roll(WO_T))
I("s_lshl_b32 s6, s3, 10")
red_write(roll(WO_T), 6)
I("s_barrier")
Lt2 = a.newlabel("L_t2")
I("s_cmp_ge_u32 s3, 4"); I(f"s_cbranch_scc1 {Lt2}")
I("v_lshlrev_b32 v3, 2, v0")
for w in range(16): I(f"ds_read_b32 v{32+w}, v3 offset:{LDS_RED + 1024*w}")
I("s_waitcnt lgkmcnt(0)")
for w in range(1, 16): I(f"v_add_f32 v32, v32, v{32+w}")
sanitize([32])
I("v_and_b32 v4, 1, v0"); I("v_mul_u32_u24 v4, 448, v4"); I("v_lshrrev_b32 v5, 1, v0")
I("s_mul_i32 s6, s4, 896"); I("s_mul_i32 s7, s5, 112"); I("s_add_u32 s6, s6, s7")
I("v_add3_u32 v4, v4, v5, s6"); I("v_lshlrev_b32 v4, 2, v4"); I(f"v_add_u32 v4, {WS_Y}, v4")
I("v_cmp_gt_u32 vcc, 112, v5"); I("s_and_saveexec_b64 s[8:9], vcc")
I(f"global_store_dword v4, v32, {sp(P_WS)} sc1")
I("s_mov_b64 exec, s[8:9]")
stamp(7)
a.label(Lt2)
I("s_cmp_ge_u32 s2, 28"); I("s_cbranch_scc1 L_end")
Lt3 = a.newlabel("L_t3")
I("s_cmp_lg_u32 s3, 15"); I(f"s_cbranch_scc1 {Lt3}")
poll(C_A2, 26, 4, 8, "L_pa2")
a.label(Lt3)
I("s_barrier")
Lt4 = a.newlabel("L_t4")
I("s_cmp_ge_u32 s3, 14"); I(f"s_cbranch_scc1 {Lt4}")
I(f"global_load_dword v16, v{V_K4}, {sp(P_WS)} offset:{WS_MOD+896*4} sc1")
I(f"v_add_u32 v4, {1344*4}, v{V_K4}")
I(f"global_load_dword v17, v4, {sp(P_WS)} offset:{WS_MOD} sc1")
I(f"global_load_dword v18, v4, {sp(P_WS)} offset:{WS_MOD+1792} sc1")
I("v_lshlrev_b32 v3, 2, v0"); I(f"v_add_u32 v3, {WS_Y}, v3")
I("v_add_u32 v4, 3584, v3"); I("v_add_u32 v5, 7168, v4"); I("v_add_u32 v6, 7168, v5"); I("v_add_u32 v7, 7168, v6")
def yloads():
    I(f"global_load_dword v8, v3, {sp(P_WS)} sc1")
    I(f"global_load_dword v9, v4, {sp(P_WS)} sc1"); I(f"global_load_dword v10, v4, {sp(P_WS)} offset:3584 sc1")
    I(f"global_load_dword v11, v5, {sp(P_WS)} sc1"); I(f"global_load_dword v12, v5, {sp(P_WS)} offset:3584 sc1")
    I(f"global_load_dword v13, v6, {sp(P_WS)} sc1"); I(f"global_load_dword v14, v6, {sp(P_WS)} offset:3584 sc1")
    I(f"global_load_dword v15, v7, {sp(P_WS)} sc1")
validated_loads(yloads, list(range(8, 16)), 19, "L_y")
stamp(8)
for kc in range(1, 8): I(f"v_add_f32 v8, v8, v{8+kc}")
bf16r(8)
I("v_mul_f32 v8, v16, v8"); bf16r(8)
I(f"v_add_f32 v{V_X2}, v{V_X}, v8"); bf16r(V_X2)
I("v_lshlrev_b32 v3, 2, v0")
I(f"ds_write_b32 v3, v{V_X2} offset:{LDS_X2}")
I("s_waitcnt lgkmcnt(0)")
a.label(Lt4)
I("s_barrier")
Lt5 = a.newlabel("L_t5")
I("s_cmp_ge_u32 s3, 14"); I(f"s_cbranch_scc1 {Lt5}")
I("s_cmp_ge_u32 s3, 7"); I("s_cselect_b32 s7, 1792, 0")
I("v_lshlrev_b32 v3, 2, v2"); I("v_add_u32 v3, s7, v3")
for i in range(7): I(f"ds_read_b32 v{8+i}, v3 offset:{LDS_X2 + 256*i}")
I("s_waitcnt lgkmcnt(0)")
mean, sd = ln_stats(list(range(8, 15)), 4)
layernorm_elem(15, V_X2, mean, sd, 16)
I("v_add_f32 v18, 1.0, v18"); bf16r(18)
I("v_mul_f32 v18, v15, v18"); bf16r(18)
I("v_add_f32 v18, v18, v17")
I("v_cvt_pk_bf16_f32 v18, v18, v18")
I(f"v_lshlrev_b32 v3, 1, v{V_AADDR}")
I(f"ds_write_b16 v3, v18 offset:{LDS_AP}")
I("s_waitcnt lgkmcnt(0)")
a.label(Lt5)
I("s_barrier")
Lt5b = a.newlabel("L_t5b")
I("s_cmp_ge_u32 s3, 14"); I(f"s_cbranch_scc1 {Lt5b}")
I("s_lshl_b32 s6, s3, 6")
afrag(8, 6, LDS_AP, 1024)
mfma8(WGU_T, 8, roll(WGU_T))
I("s_lshl_b32 s6, s3, 10")
red_write(roll(WGU_T), 6)
a.label(Lt5b)
I("s_barrier")
Lt6 = a.newlabel("L_t6")
I("s_cmp_ge_u32 s3, 2"); I(f"s_cbranch_scc1 {Lt6}")
I("v_lshlrev_b32 v3, 2, v0")
for w in range(14):
    I(f"ds_read_b32 v{32+w}, v3 offset:{LDS_RED + 1024*w}")
    I(f"ds_read_b32 v{48+w}, v3 offset:{LDS_RED + 1024*w + 512}")
I("s_waitcnt lgkmcnt(0)")
for w in range(1, 14):
    I(f"v_add_f32 v32, v32, v{32+w}"); I(f"v_add_f32 v48, v48, v{48+w}")
g, u = 32, 48
bf16r(g); bf16r(u)
I(f"v_mul_f32 v4, v{g}, v{g}")
I(f"v_mov_b32 v5, {f32(0.044715)}")
I("v_fma_f32 v4, v4, v5, 1.0")
I(f"v_mul_f32 v4, v4, v{g}")
I(f"v_mul_f32 v4, {f32(2 * 0.7978845608028654 * LOG2E)}, v4")
I("v_exp_f32 v4, v4")
I("v_add_f32 v4, 1.0, v4")
I("v_rcp_f32 v4, v4")
I("v_fma_f32 v4, v4, -2.0, 1.0")
I("v_add_f32 v4, 1.0, v4")
I(f"v_mul_f32 v4, v4, v{g}")
I("v_mul_f32 v4, 0.5, v4"); bf16r(4)
I(f"v_mul_f32 v4, v4, v{u}")
I("v_cvt_pk_bf16_f32 v4, v4, v4")
I("v_and_b32 v5, 1, v0"); I("v_lshlrev_b32 v5, 7, v5"); I("v_and_b32 v6, 0xfe, v0"); I("v_add_u32 v5, v5, v6")
I(f"ds_write_b16 v5, v4 offset:{LDS_A2}")
I("s_waitcnt lgkmcnt(0)")
a.label(Lt6)
for e in range(8):
    for r in range(4):
        I(f"v_perm_b32 v{64+4*e+r}, v{wdreg(2*r+1)+(e>>1)}, v{wdreg(2*r)+(e>>1)}, " + ("s95" if e % 2 == 0 else "s96"))
I("s_barrier")
Lt6b = a.newlabel("L_t6b")
I("s_cmp_ge_u32 s3, 8"); I(f"s_cbranch_scc1 {Lt6b}")
I("s_and_b32 s6, s3, 1"); I("s_lshl_b32 s6, s6, 6")
afrag(8, 6, LDS_A2, 128)
mfma8(64, 8, roll(64))
I("s_lshl_b32 s6, s3, 10")
red_write(roll(64), 6)
a.label(Lt6b)
I("s_barrier")
I("v_lshrrev_b32 v4, 8, v0"); I("v_lshlrev_b32 v4, 11, v4"); I("v_and_b32 v5, 255, v0"); I("v_lshlrev_b32 v6, 2, v5"); I("v_add_u32 v4, v4, v6")
I(f"ds_read_b32 v8, v4 offset:{LDS_RED}"); I(f"ds_read_b32 v9, v4 offset:{LDS_RED+1024}")
I("v_lshrrev_b32 v4, 8, v0"); I("v_lshlrev_b32 v4, 7, v4"); I("v_lshrrev_b32 v5, 1, v5"); I("v_add_u32 v4, v4, v5")
I("v_and_b32 v5, 1, v0"); I("v_mul_u32_u24 v5, 448, v5"); I("v_add_u32 v5, v5, v4")
I("s_mul_i32 s6, s2, 896"); I("v_add_u32 v5, s6, v5"); I("v_lshlrev_b32 v5, 2, v5"); I(f"v_add_u32 v5, {WS_Z}, v5")
I("s_waitcnt lgkmcnt(0)")
I("v_add_f32 v8, v8, v9")
sanitize([8])
I("v_cmp_gt_u32 vcc, 448, v4"); I("s_and_saveexec_b64 s[8:9], vcc")
I(f"global_store_dword v5, v8, {sp(P_WS)} sc1")
I("s_mov_b64 exec, s[8:9]")
stamp(9)
I("s_cmp_lg_u32 s3, 0"); I("s_cbranch_scc1 L_end")
I(f"v_and_b32 v4, 1, v{V_G}"); I("v_mul_u32_u24 v4, 448, v4")
I(f"s_lshl_b32 s6, s2, 4"); I(f"v_add3_u32 v4, v4, v{V_I}, s6")
I("v_lshlrev_b32 v5, 2, v4")
I(f"v_add_u32 v6, {WS_Z}, v5")
I(f"v_and_b32 v7, 1, v{V_G}"); I("v_mul_u32_u24 v7, 2240, v7"); I("s_movk_i32 s6, 2240"); I("v_add3_u32 v7, v7, v4, s6"); I("v_lshlrev_b32 v7, 2, v7")
I(f"global_load_dword v92, v7, {sp(P_WS)} offset:{WS_MOD} sc1")
I(f"ds_read_b32 v93, v5 offset:{LDS_X2}")
def zloads():
    I("v_mov_b32 v7, v6")
    for p in range(28):
        I(f"global_load_dword v{32+p}, v7, {sp(P_WS)} sc1")
        if p < 27: I("v_add_u32 v7, 3584, v7")
validated_loads(zloads, list(range(32, 60)), 8, "L_z")
I("s_waitcnt lgkmcnt(0)")
for p in range(1, 28): I(f"v_add_f32 v32, v32, v{32+p}")
bf16r(32)
I("v_mul_f32 v32, v92, v32"); bf16r(32)
I("v_add_f32 v32, v93, v32")
I("v_cvt_pk_bf16_f32 v32, v32, v32")
srd(44, P_OUT, 1792)
I("v_lshlrev_b32 v4, 1, v4")
I("v_cmp_gt_u32 vcc, 32, v2")
I("s_and_saveexec_b64 s[8:9], vcc")
I("buffer_store_short v32, v4, s[44:47], 0 offen")
I("s_mov_b64 exec, -1")
stamp(10)
stamp_flush(11)
a.label("L_end")
I("s_endpgm")
a.raw('.section .rodata,"a"'); a.raw(".p2align 6"); a.raw(f".amdhsa_kernel {NAME}")
a.raw("  .amdhsa_next_free_vgpr 128"); a.raw("  .amdhsa_next_free_sgpr 100"); a.raw("  .amdhsa_accum_offset 128")
a.raw("  .amdhsa_group_segment_fixed_size 0"); a.raw("  .amdhsa_kernarg_size 112"); a.raw("  .amdhsa_user_sgpr_count 2")
a.raw("  .amdhsa_user_sgpr_kernarg_segment_ptr 1"); a.raw("  .amdhsa_system_sgpr_workgroup_id_x 1"); a.raw(".end_amdhsa_kernel")
out = sys.argv[1] if len(sys.argv) > 1 else "adaLN_cond__mha_block_cached__geglu_ffn__decode.s"
open(out, "w").write(a.text())
print("wrote", out, len(a.lines), "lines")
```

```python
import struct, sys, os
from asmlib import Asm

NAME = "adaLN_cond__mha_block_cached__geglu_ffn__decode_kernel"
NT = os.environ.get("NT", "nt")
NSVC = 32
NWG = 256
WIN = int(os.environ.get("WIN", "0"))
STAMP = int(os.environ.get("STAMP", "0"))

def f32(x):
    return "0x%08x" % struct.unpack("<I", struct.pack("<f", x))[0]

LOG2E = 1.4426950408889634

WS_MOD = 0x0
WS_INIT = 0x10000
WS_PO = 0x10000
WS_PML = 0x48000
WS_Y = 0x49000
WS_Z = 0x50000
WS_QP = 0x80000
WS_ST = 0x200000
C_I = 8
C_A2 = 4
C_A = 8
WS_Q = 0x6A000

P_X, P_K, P_V, P_WQ, P_WO, P_BX, P_WG, P_WU, P_WD, P_C, P_WM, P_OUT, P_DBG, P_WS = [16 + 2 * i for i in range(14)]
def sp(p): return f"s[{p}:{p+1}]"

a = Asm()
I = a

def stamp(idx):
    if STAMP:
        I(f"s_memrealtime s[{66+2*idx}:{67+2*idx}]")
def stamp_flush(n):
    if not STAMP: return
    I("s_waitcnt lgkmcnt(0)")
    I("s_lshl_b32 s91, s2, 4"); I("s_add_u32 s91, s91, s3"); I("s_lshl_b32 s91, s91, 6"); I(f"s_add_u32 s91, s91, {WS_ST}")
    I("s_mov_b64 s[92:93], exec")
    I("s_mov_b64 exec, 1")
    I("v_mov_b32 v1, s91")
    for k in range(n):
        I(f"v_mov_b32 v3, s{66+2*k}")
        I(f"global_store_dword v1, v3, {sp(P_WS)} offset:{4*k}")
    I("s_mov_b64 exec, s[92:93]")

def srd(dst, ptr, nbytes):
    I(f"s_mov_b32 s{dst}, s{ptr}")
    I(f"s_and_b32 s{dst+1}, s{ptr+1}, 0xffff")
    I(f"s_mov_b32 s{dst+2}, {nbytes}")
    I(f"s_mov_b32 s{dst+3}, 0x20000")

def bf16r(v):
    I(f"v_cvt_pk_bf16_f32 v{v}, v{v}, v{v}")
    I(f"v_lshlrev_b32 v{v}, 16, v{v}")

def sanitize(regs):
    for r in regs:
        I(f"v_min_u32 v{r}, 0xfffffffe, v{r}" if False else f"v_min_u32 v{r}, s94, v{r}")

TMO = int(os.environ.get("TMO", "200000"))
def poll(off, target, vt, st, lab, sleep=1):
    L = a.newlabel(lab); D = a.newlabel(lab + "d")
    I(f"v_mov_b32 v{vt}, 0")
    I("s_mov_b32 s90, 0")
    a.label(L)
    I(f"global_load_dword v{vt+1}, v{vt}, {sp(P_DBG)} offset:{off} sc1")
    I("s_waitcnt vmcnt(0)")
    I(f"v_readfirstlane_b32 s{st}, v{vt+1}")
    I(f"s_cmp_ge_u32 s{st}, {target}")
    I(f"s_cbranch_scc1 {D}")
    I("s_add_u32 s90, s90, 1")
    I(f"s_cmp_ge_u32 s90, {TMO}")
    I(f"s_cbranch_scc1 {D}")
    I(f"s_sleep {sleep}")
    I(f"s_branch {L}")
    a.label(D)

def signal(off, vt):
    I(f"v_mov_b32 v{vt}, 0")
    I(f"v_mov_b32 v{vt+1}, 1")
    I("s_mov_b64 exec, 1")
    I(f"global_atomic_add v{vt}, v{vt+1}, {sp(P_DBG)} offset:{off} sc1")
    I("s_mov_b64 exec, -1")

def validated_loads(emit_loads, regs, tmp, lab, sleep=0):
    L = a.newlabel(lab); D = a.newlabel(lab + "d")
    I("s_mov_b32 s90, 0")
    a.label(L)
    emit_loads()
    I("s_waitcnt vmcnt(0)")
    rs = list(regs)
    if len(rs) == 1:
        I(f"v_mov_b32 v{tmp}, v{rs[0]}")
    else:
        I(f"v_max_u32 v{tmp}, v{rs[0]}, v{rs[1]}")
        k = 2
        while k < len(rs):
            if k + 1 < len(rs):
                I(f"v_max3_u32 v{tmp}, v{tmp}, v{rs[k]}, v{rs[k+1]}"); k += 2
            else:
                I(f"v_max_u32 v{tmp}, v{tmp}, v{rs[k]}"); k += 1
    I(f"v_cmp_eq_u32 vcc, -1, v{tmp}")
    I(f"s_cbranch_vccz {D}")
    I("s_add_u32 s90, s90, 1")
    I(f"s_cmp_ge_u32 s90, {TMO}")
    I(f"s_cbranch_scc1 {D}")
    if sleep: I(f"s_sleep {sleep}")
    I(f"s_branch {L}")
    a.label(D)

def allreduce16(regs, op="v_add_f32"):
    for perm in ("quad_perm:[1,0,3,2]", "quad_perm:[2,3,0,1]", "row_half_mirror", "row_mirror"):
        for r in regs:
            I(f"{op}_dpp v{r}, v{r}, v{r} {perm} row_mask:0xf bank_mask:0xf")

def allreduce_swap(regs, temps, which, op="v_add_f32"):
    for r, t in zip(regs, temps):
        I(f"v_mov_b32 v{t}, v{r}")
    for r, t in zip(regs, temps):
        I(f"v_permlane{which}_swap_b32 v{r}, v{t}")
    for r, t in zip(regs, temps):
        I(f"{op} v{r}, v{r}, v{t}")

def treduce(regs, bit):
    n = len(regs) // 2
    lo, hi = regs[:n], regs[n:]
    if bit in (5, 4):
        w = 32 if bit == 5 else 16
        for x, y in zip(lo, hi):
            I(f"v_permlane{w}_swap_b32 v{x}, v{y}")
        for x, y in zip(lo, hi):
            I(f"v_add_f32 v{x}, v{x}, v{y}")
    elif bit == 3:
        for x, y in zip(lo, hi):
            I(f"v_add_f32_dpp v{x}, v{x}, v{x} row_ror:8 row_mask:0xf bank_mask:0x3")
        for x, y in zip(lo, hi):
            I(f"v_add_f32_dpp v{x}, v{y}, v{y} row_ror:8 row_mask:0xf bank_mask:0xc")
    elif bit == 2:
        for x, y in zip(lo, hi):
            I(f"v_add_f32_dpp v{x}, v{x}, v{x} row_shl:4 row_mask:0xf bank_mask:0x5")
        for x, y in zip(lo, hi):
            I(f"v_add_f32_dpp v{x}, v{y}, v{y} row_shr:4 row_mask:0xf bank_mask:0xa")
    return lo

a.raw(f"; @launch grid=({NWG},1,1) block=(1024,1,1) lds=163840")
a.raw('.amdgcn_target "amdgcn-amd-amdhsa--gfx950"')
a.raw(".text"); a.raw(f".globl {NAME}"); a.raw(".p2align 8"); a.raw(f".type {NAME},@function"); a.raw(f"{NAME}:")
I(f"s_cmp_ge_u32 s2, {NWG}")
I("s_cbranch_scc1 L_end")
I("s_load_dwordx16 s[16:31], s[0:1], 0")
I("s_load_dwordx8 s[32:39], s[0:1], 64")
I("s_load_dwordx4 s[40:43], s[0:1], 96")
I("v_lshrrev_b32 v1, 6, v0")
I("v_and_b32 v2, 63, v0")
I("v_readfirstlane_b32 s3, v1")
I("s_mov_b32 s94, 0xfffffffe")
I("s_mov_b32 s95, 0x05040100")
I("s_mov_b32 s96, 0x07060302")
I("s_waitcnt lgkmcnt(0)")
I(f"s_cmp_lt_u32 s2, {NSVC}")
I("s_cbranch_scc1 L_service")

if os.environ.get("NOSTREAM"): I("s_endpgm")
NS = 20; NVP = 7; KB = 8; VB = 88; T0 = 116; ACC = 120; QR = 4
I(f"s_sub_u32 s4, s2, {NSVC}")
I("s_mul_i32 s5, s4, 9363"); I("s_lshr_b32 s5, s5, 16")
I("s_mul_i32 s6, s5, 7"); I("s_sub_u32 s6, s4, s6")
stamp(0)
I("s_cmp_eq_u32 s3, 15")
I("s_cbranch_scc1 L_ctrl")
I("s_barrier")
srd(44, P_K, 0x4000000)
srd(48, P_V, 0x4000000)
I("s_mul_i32 s7, s6, 15"); I("s_add_u32 s7, s7, s3")
I("s_lshl_b32 s8, s7, 11")
I(f"s_mov_b32 s9, {(2**32 + 104)//105}")
I("s_mul_hi_u32 s10, s8, s9")
I("s_add_u32 s8, s8, 2048"); I("s_mul_hi_u32 s11, s8, s9")
I("s_sub_u32 s11, s11, s10")
I("s_lshl_b32 s12, s5, 21"); I("s_lshl_b32 s13, s10, 10"); I("s_add_u32 s12, s12, s13")
I("v_lshlrev_b32 v3, 4, v2"); I("v_add_u32 v1, s12, v3")
I("s_mov_b32 s60, 4096"); I("s_mov_b32 s61, 8192"); I("s_mov_b32 s62, 12288"); I("s_mov_b32 s63, 16384")
I("s_mov_b32 s64, 0x40000000"); I("s_mov_b32 s65, 0xff800000")
I("s_cmp_eq_u32 s11, 20"); I("s_cselect_b32 s64, s63, s64"); I("s_cselect_b32 s65, 0, s65")
so = {0: "0", 1: "s60", 2: "s61", 3: "s62", 4: "s63"}
issued = []
NPRE = int(os.environ.get("NPRE", "1000"))
b1_done = [False]
def maybe_b1():
    if not b1_done[0] and len(issued) >= NPRE:
        stamp(1)
        I("v_mov_b32 v3, 0"); I("s_mov_b32 s90, 0")
        a.label("L_qf")
        I("ds_read_b32 v4, v3 offset:1020")
        I("s_waitcnt lgkmcnt(0)")
        I("v_readfirstlane_b32 s7, v4")
        I("s_cmp_eq_u32 s7, 1"); I("s_cbranch_scc1 L_qfd")
        I("s_add_u32 s90, s90, 1"); I(f"s_cmp_ge_u32 s90, {TMO*10}"); I("s_cbranch_scc1 L_qfd")
        I("s_sleep 2"); I("s_branch L_qf")
        a.label("L_qfd")
        stamp(2)
        b1_done[0] = True
def sload(kind, i, reg):
    maybe_b1()
    s = so[i // 4] if i != NS - 1 else "s64"
    r = 44 if kind == "K" else 48
    I(f"buffer_load_dwordx4 v[{reg}:{reg+3}], v1, s[{r}:{r+3}], {s} offen offset:{(i%4)*1024} {NT}")
    issued.append((kind, i))
def swait(kind, i):
    idx = issued.index((kind, i))
    I(f"s_waitcnt vmcnt({len(issued) - 1 - idx})")
def throttle():
    if WIN and len(issued) >= WIN:
        I(f"s_waitcnt vmcnt({WIN-1})")
vreg = {}
NVL = 8
LDS_V = 33792
for i in range(NS):
    throttle(); sload("K", i, KB + 4 * i)
for i in range(NVP):
    vreg[i] = VB + 4 * i
    throttle(); sload("V", i, vreg[i])
I(f"s_lshl_b32 s14, s3, 13"); I(f"s_add_u32 s14, s14, {LDS_V}")
for i in range(NVP, NVP + NVL):
    throttle(); maybe_b1()
    I(f"s_add_u32 s15, s14, {(i - NVP) * 1024 - (i % 4) * 1024 + 4096}"); I("s_sub_u32 m0, s15, 4096")
    I("s_nop 0")
    I(f"buffer_load_dwordx4 v1, s[48:51], {so[i // 4]} offen offset:{(i%4)*1024} {NT} lds")
    issued.append(("V", i))
NPRE = 0; maybe_b1()
I("v_and_b32 v3, 31, v2"); I("v_lshlrev_b32 v3, 4, v3")
I(f"ds_read_b128 v[{QR}:{QR+3}], v3")
I("s_waitcnt lgkmcnt(0)")
nextv = NVP + NVL
for g0 in range(0, NS, 4):
    grp = list(range(g0, g0 + 4))
    swait("K", grp[-1])
    if g0 == 0:
        for r in range(4):
            I(f"v_dot2_f32_bf16 v{KB}, v{KB+r}, v{QR+r}, " + ("0" if r == 0 else f"v{KB}"))
    for r in range(4):
        for s in grp:
            if s == 0: continue
            d = KB + s
            src2 = "0" if r == 0 else f"v{d}"
            I(f"v_dot2_f32_bf16 v{d}, v{KB+4*s+r}, v{QR+r}, {src2}")
    for s in grp:
        if s >= 5 + NVL and nextv < NS:
            vreg[nextv] = KB + 4 * s
            sload("V", nextv, vreg[nextv]); nextv += 1
    ds = [KB + s for s in grp]
    allreduce16(ds)
    allreduce_swap(ds, [T0 + k for k in range(4)], 16)
    for d in ds: I(f"v_cvt_pk_bf16_f32 v{d}, v{d}, v{d}")
    for d in ds: I(f"v_lshlrev_b32 v{d}, 16, v{d}")
    for d in ds: I(f"v_mul_f32 v{d}, {f32(0.0625 * LOG2E)}, v{d}")
assert nextv == NS
stamp(3)
I(f"v_add_f32 v{KB+NS-1}, s65, v{KB+NS-1}")
M_, L_ = 4, 5
I(f"v_max3_f32 v{M_}, v{KB}, v{KB+1}, v{KB+2}")
for s in range(3, NS - 1, 2):
    I(f"v_max3_f32 v{M_}, v{M_}, v{KB+s}, v{KB+s+1}")
I(f"v_max_f32 v{M_}, v{M_}, v{KB+NS-1}")
for s in range(NS): I(f"v_sub_f32 v{KB+s}, v{KB+s}, v{M_}")
for s in range(NS): I(f"v_exp_f32 v{KB+s}, v{KB+s}")
I(f"v_add_f32 v{L_}, v{KB}, v{KB+1}")
for s in range(2, NS): I(f"v_add_f32 v{L_}, v{L_}, v{KB+s}")
for s in range(NS): I(f"v_cvt_pk_bf16_f32 v{KB+s}, v{KB+s}, 0")
for j in range(8): I(f"v_mov_b32 v{ACC+j}, 0")
I("v_lshlrev_b32 v6, 4, v2"); I("v_add_u32 v6, s14, v6")
for s in range(NS):
    if s == NVP - 2:
        swait("V", NVP + NVL - 1)
        for k in range(NVL):
            vreg[NVP + k] = KB + 4 * (5 + k)
            I(f"ds_read_b128 v[{vreg[NVP+k]}:{vreg[NVP+k]+3}], v6 offset:{1024*k}")
    if s == NVP:
        I("s_waitcnt lgkmcnt(0)")
    if not (NVP <= s < NVP + NVL):
        swait("V", s)
    t = T0 + (s & 1)
    I(f"v_lshlrev_b32 v{t}, 16, v{KB+s}")
    for r in range(4):
        I(f"v_dot2_f32_bf16 v{ACC+2*r}, v{vreg[s]+r}, v{KB+s}, v{ACC+2*r}")
        I(f"v_dot2_f32_bf16 v{ACC+2*r+1}, v{vreg[s]+r}, v{t}, v{ACC+2*r+1}")
stamp(4)
LDS_O = 1024; LDS_ML = 32768
I("v_lshrrev_b32 v6, 5, v2")
I("s_lshl_b32 s7, s3, 1")
I("v_add_u32 v6, s7, v6")
I("v_lshlrev_b32 v7, 10, v6")
I("v_and_b32 v3, 31, v2"); I("v_lshlrev_b32 v8, 5, v3"); I("v_add_u32 v7, v7, v8")
I(f"ds_write_b128 v7, v[{ACC}:{ACC+3}] offset:{LDS_O}")
I(f"ds_write_b128 v7, v[{ACC+4}:{ACC+7}] offset:{LDS_O+16}")
I("v_lshlrev_b32 v6, 3, v6")
I("v_cmp_eq_u32 vcc, 0, v3")
I("s_and_saveexec_b64 s[8:9], vcc")
I(f"ds_write_b64 v6, v[{M_}:{M_+1}] offset:{LDS_ML}")
I("s_mov_b64 exec, s[8:9]")
I("s_waitcnt lgkmcnt(0)")
a.label("L_b2")
I("s_barrier")
stamp(5)
I("s_cmp_ge_u32 s3, 4")
I("s_cbranch_scc1 L_send")
I("v_mov_b32 v1, 0")
for k in range(15):
    I(f"ds_read_b128 v[{8+4*k}:{11+4*k}], v1 offset:{LDS_ML+16*k}")
I("v_lshlrev_b32 v2, 2, v0")
for k in range(30):
    I(f"ds_read_b32 v{70+k}, v2 offset:{LDS_O+1024*k}")
I("s_waitcnt lgkmcnt(0)")
ms = [8 + 2 * k for k in range(30)]
I(f"v_max3_f32 v4, v{ms[0]}, v{ms[1]}, v{ms[2]}")
for k in range(3, 29, 2):
    I(f"v_max3_f32 v4, v4, v{ms[k]}, v{ms[k+1]}")
I(f"v_max_f32 v4, v4, v{ms[29]}")
for k in range(30): I(f"v_sub_f32 v{ms[k]}, v{ms[k]}, v4")
for k in range(30): I(f"v_exp_f32 v{ms[k]}, v{ms[k]}")
I("v_mov_b32 v5, 0"); I("v_mov_b32 v6, 0")
for k in range(30):
    I(f"v_fmac_f32 v5, v{ms[k]}, v{ms[k]+1}")
    I(f"v_fmac_f32 v6, v{ms[k]}, v{70+k}")
sanitize([4, 5, 6])
I("s_lshl_b32 s7, s4, 10")
I("v_add_u32 v2, s7, v2")
I(f"v_add_u32 v2, {WS_PO}, v2")
I(f"global_store_dword v2, v6, {sp(P_WS)} sc1")
I("s_lshl_b32 s7, s4, 3")
I(f"s_add_u32 s7, s7, {WS_PML}")
I("v_mov_b32 v3, s7")
I("v_cmp_eq_u32 vcc, 0, v0")
I("s_and_saveexec_b64 s[8:9], vcc")
I(f"global_store_dwordx2 v3, v[4:5], {sp(P_WS)} sc1")
I("s_mov_b64 exec, s[8:9]")
a.label("L_send")
stamp(6); stamp(7)
stamp_flush(8)
I("s_endpgm")

a.label("L_ctrl")
I("s_setprio 3")
I("v_mov_b32 v3, 0"); I("ds_write_b32 v3, v3 offset:1020"); I("s_waitcnt lgkmcnt(0)")
I("s_barrier")
poll(C_I, 32, 3, 8, "L_ci", sleep=4)
stamp(1)
I("s_lshl_b32 s7, s5, 9"); I(f"s_add_u32 s7, s7, {WS_Q}")
I("v_and_b32 v3, 31, v2"); I("v_lshlrev_b32 v3, 4, v3"); I("v_add_u32 v5, s7, v3")
validated_loads(lambda: I(f"global_load_dwordx4 v[8:11], v5, {sp(P_WS)} sc1"), [8, 9, 10, 11], 12, "L_cq", sleep=2)
I("ds_write_b128 v3, v[8:11]")
I("s_waitcnt lgkmcnt(0)")
I("v_mov_b32 v3, 0"); I("v_mov_b32 v4, 1"); I("ds_write_b32 v3, v4 offset:1020"); I("s_waitcnt lgkmcnt(0)")
stamp(2)
I("s_branch L_b2")

a.label("L_service")
if os.environ.get("NOSERVICE"): I("s_endpgm")
if os.environ.get("SVCLD"):
    n = int(os.environ["SVCLD"]); pol = os.environ.get("SVCPOL", "")
    srd(48, P_WQ, 448 * 4096 * 2)
    I("s_lshl_b32 s4, s2, 4"); I("s_add_u32 s4, s4, s3"); I(f"s_mul_i32 s4, s4, {n*1024}")
    I("v_lshlrev_b32 v3, 4, v2"); I("v_add_u32 v3, s4, v3")
    for k in range(n):
        I(f"s_mov_b32 s5, {k*1024}")
        I(f"buffer_load_dwordx4 v[{32+4*k}:{35+4*k}], v3, s[48:51], s5 offen {pol}")
    I("s_waitcnt vmcnt(0)")
    I("s_endpgm")
LDS_A = 0
LDS_AP = 4096
LDS_ZERO = 6144
LDS_H = 6208
LDS_SC = 6272
LDS_X2 = 6656
LDS_A2 = 10240
LDS_RED = 10752
V_LN, V_SILU, V_X, V_K4, V_X2, V_G, V_I, V_AADDR = 24, 25, 26, 27, 28, 29, 30, 31
ACCS = list(range(64, 80))
AV = 80
stamp(0)
srd(44, P_WM, 0 if os.environ.get("NOWM") else 448 * 2688 * 2)
srd(48, P_WQ, 0 if os.environ.get("NOWQ") else 448 * 4096 * 2)
srd(52, P_C, 1792)
srd(56, P_X, 1792)
I(f"v_lshrrev_b32 v{V_G}, 4, v2"); I(f"v_and_b32 v{V_I}, 15, v2")
I("v_mov_b32 v64, -1"); I("v_mov_b32 v65, -1"); I("v_mov_b32 v66, -1"); I("v_mov_b32 v67, -1")
I("s_mul_i32 s4, s2, 12288"); I(f"s_add_u32 s4, s4, {WS_INIT}")
I("v_lshlrev_b32 v3, 4, v0"); I("v_add_u32 v3, s4, v3")
Lin = a.newlabel("L_noinit")
I("s_cmp_ge_u32 s3, 12"); I(f"s_cbranch_scc1 {Lin}")
if not os.environ.get("NOINIT"): I(f"global_store_dwordx4 v3, v[64:67], {sp(P_WS)} sc1")
a.label(Lin)
I("v_lshrrev_b32 v3, 2, v2")
I("s_lshl_b32 s4, s3, 5"); I("v_add_u32 v3, s4, v3")
I("v_mov_b32 v96, v3")
I("s_mov_b32 s5, 5376"); I("v_mul_lo_u32 v4, v3, s5")
I("v_and_b32 v5, 3, v2"); I("v_lshlrev_b32 v5, 4, v5")
I("s_lshl_b32 s6, s2, 6"); I("v_add3_u32 v4, v4, v5, s6")
I("s_mov_b32 s60, 86016")
I("buffer_load_dwordx4 v[100:103], v4, s[44:47], 0 offen")
I("buffer_load_dwordx4 v[104:107], v4, s[44:47], s60 offen")
I("v_lshlrev_b32 v6, 1, v0")
I("buffer_load_ushort v7, v6, s[52:55], 0 offen")
I(f"buffer_load_ushort v{V_X}, v6, s[56:59], 0 offen")
I("s_cmp_ge_u32 s3, 7"); I("s_cselect_b32 s7, 896, 0")
I("v_lshlrev_b32 v8, 4, v2"); I("v_add_u32 v8, s7, v8")
I("v_mov_b32 v9, 0x40000000"); I("v_cmp_gt_u32 vcc, 56, v2"); I("v_cndmask_b32 v8, v9, v8, vcc")
I("buffer_load_dwordx4 v[10:13], v8, s[56:59], 0 offen")
I("v_add_u32 v3, 64, v0")
I("v_cmp_gt_u32 vcc, 448, v0")
I(f"v_cndmask_b32 v{V_AADDR}, v3, v0, vcc")
I("v_subrev_u32 v3, 896, v0")
I("v_and_b32 v4, 63, v3"); I("v_lshrrev_b32 v3, 6, v3"); I("v_lshlrev_b32 v3, 9, v3")
I("v_add_u32 v3, v3, v4"); I("v_add_u32 v3, 448, v3")
I("v_cmp_gt_u32 vcc, 896, v0")
I(f"v_cndmask_b32 v{V_AADDR}, v3, v{V_AADDR}, vcc")
I("v_add_u32 v3, 2240, v0")
I("v_cmp_gt_u32 vcc, 448, v0")
I(f"v_cndmask_b32 v{V_K4}, v3, v0, vcc")
I(f"v_lshlrev_b32 v{V_K4}, 2, v{V_K4}")
I("v_mov_b32 v4, 0"); I("v_lshlrev_b32 v3, 2, v2")
I("v_cmp_gt_u32 vcc, 16, v2"); I("s_and_saveexec_b64 s[8:9], vcc")
I(f"ds_write_b32 v3, v4 offset:{LDS_ZERO}")
I("s_mov_b64 exec, s[8:9]")
I("s_barrier")
I(f"v_lshlrev_b32 v3, 3, v{V_G}"); I("s_lshl_b32 s4, s3, 5"); I("v_add_u32 v3, s4, v3")
I("v_lshlrev_b32 v4, 13, v3")
I(f"v_lshlrev_b32 v5, 4, v{V_I}"); I("s_lshl_b32 s6, s2, 8"); I("v_add3_u32 v4, v4, v5, s6")
WQ_R = 32
for jj in range(8):
    I(f"s_mov_b32 s61, {jj*8192}")
    I(f"buffer_load_dwordx4 v[{WQ_R+4*jj}:{WQ_R+4*jj+3}], v4, s[48:51], s61 offen")
if os.environ.get("FINE"): stamp(4)
I("s_waitcnt vmcnt(8)")
if os.environ.get("FINE"): stamp(5)
I("v_lshlrev_b32 v7, 16, v7")
I(f"v_lshlrev_b32 v{V_X}, 16, v{V_X}")
I(f"v_mul_f32 v8, {f32(-LOG2E)}, v7")
I("v_exp_f32 v8, v8")
I("v_add_f32 v8, 1.0, v8")
I("v_rcp_f32 v8, v8")
I("v_mul_f32 v8, v7, v8")
I(f"v_cvt_pk_bf16_f32 v{V_SILU}, v8, 0")
I(f"v_lshlrev_b32 v3, 2, v{V_AADDR}")
I(f"ds_write_b32 v3, v{V_SILU} offset:{LDS_A}")
def ln_stats(xs, t0, masked=False):
    s = t0
    I(f"v_add_f32 v{s}, v{xs[0]}, v{xs[1]}")
    for r in xs[2:]: I(f"v_add_f32 v{s}, v{s}, v{r}")
    allreduce16([s]); allreduce_swap([s], [t0 + 1], 16); allreduce_swap([s], [t0 + 1], 32)
    I(f"v_mul_f32 v{s}, {f32(1.0/448)}, v{s}")
    q = t0 + 2
    I(f"v_sub_f32 v{t0+1}, v{xs[0]}, v{s}")
    I(f"v_mul_f32 v{q}, v{t0+1}, v{t0+1}")
    for r in xs[1:]:
        I(f"v_sub_f32 v{t0+1}, v{r}, v{s}")
        I(f"v_fmac_f32 v{q}, v{t0+1}, v{t0+1}")
    if masked:
        I(f"v_cmp_gt_u32 vcc, 56, v2"); I(f"v_cndmask_b32 v{q}, 0, v{q}, vcc")
    allreduce16([q]); allreduce_swap([q], [t0 + 1], 16); allreduce_swap([q], [t0 + 1], 32)
    I(f"v_mul_f32 v{q}, {f32(1.0/448)}, v{q}")
    bf16r(s); bf16r(q)
    I(f"v_add_f32 v{q}, {f32(1e-5)}, v{q}"); bf16r(q)
    I(f"v_sqrt_f32 v{q}, v{q}"); bf16r(q)
    return s, q
def layernorm_elem(dst, x, mean, sd, t):
    I(f"v_sub_f32 v{dst}, v{x}, v{mean}"); bf16r(dst)
    I(f"v_rcp_f32 v{t}, v{sd}")
    I(f"v_mul_f32 v{dst}, v{dst}, v{t}"); bf16r(dst)
for k in range(4): I(f"v_and_b32 v{14+k}, 0xffff0000, v{10+k}")
for k in range(4): I(f"v_lshlrev_b32 v{10+k}, 16, v{10+k}")
mean, sd = ln_stats(list(range(10, 18)), 18, masked=True)
layernorm_elem(V_LN, V_X, mean, sd, 21)
Lx = a.newlabel("L_x")
I("s_cmp_ge_u32 s3, 14"); I(f"s_cbranch_scc1 {Lx}")
I("v_lshlrev_b32 v3, 2, v0")
I(f"ds_write_b32 v3, v{V_LN} offset:{LDS_X2}")
a.label(Lx)
I("s_waitcnt lgkmcnt(0)")
if os.environ.get("FINE"): stamp(6)
I("s_barrier")
stamp(1)
if os.environ.get("FINE"):
    stamp_flush(8); I("s_endpgm")
def gemv(arow_reg, astride_rows, abase, bstride, nload):
    I(f"v_lshlrev_b32 v3, 2, v{arow_reg}")
    for i in range(nload):
        for b in range(2):
            I(f"ds_read_b32 v{AV + 2*i + b}, v3 offset:{abase + b*bstride + i*astride_rows*4}")
    for r in ACCS: I(f"v_mov_b32 v{r}, 0")
    I("s_waitcnt lgkmcnt(0)")
def gemv_mac(wq, i, tmp):
    I(f"v_lshlrev_b32 v{tmp}, 16, v{AV+2*i}")
    I(f"v_lshlrev_b32 v{tmp+1}, 16, v{AV+2*i+1}")
    for r in range(4):
        for b in range(2):
            I(f"v_dot2_f32_bf16 v{ACCS[b*8+2*r]}, v{wq+r}, v{AV+2*i+b}, v{ACCS[b*8+2*r]}")
            I(f"v_dot2_f32_bf16 v{ACCS[b*8+2*r+1]}, v{wq+r}, v{tmp+b}, v{ACCS[b*8+2*r+1]}")
gemv(96, 16, LDS_A, 2048, 2)
for i in range(2): gemv_mac(100 + 4 * i, i, 4)
r = treduce(ACCS, 5); r = treduce(r, 4); r = treduce(r, 3); r = treduce(r, 2)
I("s_lshl_b32 s4, s3, 8"); I("v_lshlrev_b32 v3, 2, v2"); I("v_add_u32 v3, s4, v3")
I(f"ds_write_b32 v3, v{r[0]} offset:{LDS_RED}")
I("s_waitcnt lgkmcnt(0)")
I("s_barrier")
Ls1 = a.newlabel("L_s1")
I("s_cmp_lg_u32 s3, 0"); I(f"s_cbranch_scc1 {Ls1}")
I("v_lshlrev_b32 v3, 2, v2")
for w in range(16): I(f"ds_read_b32 v{8+w}, v3 offset:{LDS_RED + 256*w}")
I("s_waitcnt lgkmcnt(0)")
for w in range(1, 16): I(f"v_add_f32 v8, v8, v{8+w}")
bf16r(8)
I("v_lshrrev_b32 v4, 5, v2"); I("s_mov_b32 s5, 2688"); I("v_mul_lo_u32 v4, v4, s5")
I("v_bfe_u32 v5, v2, 2, 3")
I("v_and_b32 v6, 3, v2"); I("v_lshlrev_b32 v6, 3, v6")
I("v_add3_u32 v4, v4, v5, v6")
I("s_lshl_b32 s5, s2, 5"); I("v_add_u32 v4, s5, v4"); I("v_lshlrev_b32 v4, 2, v4")
I(f"global_store_dword v4, v8, {sp(P_WS)} offset:{WS_MOD} sc1")
I("s_waitcnt vmcnt(0)")
signal(C_A, 4)
stamp(2)
poll(C_A, 32, 4, 8, "L_pa")
a.label(Ls1)
I("s_waitcnt vmcnt(0)")
for e in range(8):
    for r in range(4):
        hi = WQ_R + 4 * (2 * r + 1) + (e >> 1); lo = WQ_R + 4 * (2 * r) + (e >> 1)
        I(f"v_perm_b32 v{64+4*e+r}, v{hi}, v{lo}, " + ("s95" if e % 2 == 0 else "s96"))
I("s_barrier")
Ls2 = a.newlabel("L_s2")
I("s_cmp_ge_u32 s3, 14"); I(f"s_cbranch_scc1 {Ls2}")
I(f"global_load_dword v4, v{V_K4}, {sp(P_WS)} offset:{WS_MOD} sc1")
I(f"global_load_dword v5, v{V_K4}, {sp(P_WS)} offset:{WS_MOD+1792} sc1")
I("s_waitcnt vmcnt(0)")
I("v_add_f32 v5, 1.0, v5"); bf16r(5)
I(f"v_mul_f32 v5, v{V_LN}, v5"); bf16r(5)
I("v_add_f32 v5, v5, v4")
I("v_cvt_pk_bf16_f32 v5, v5, v5")
I(f"v_lshlrev_b32 v3, 1, v{V_AADDR}")
I(f"ds_write_b16 v3, v5 offset:{LDS_AP}")
I("s_waitcnt lgkmcnt(0)")
a.label(Ls2)
I("s_barrier")
def afrag(dst, k0reg_s, base, rowstride):
    I(f"v_mul_u32_u24 v4, {rowstride}, v{V_I}"); I(f"v_lshlrev_b32 v5, 4, v{V_G}"); I(f"v_add3_u32 v4, v4, v5, s{k0reg_s}")
    I(f"v_add_u32 v4, {base}, v4")
    I(f"v_mov_b32 v5, {LDS_ZERO}"); I(f"v_cmp_gt_u32 vcc, 2, v{V_I}"); I("v_cndmask_b32 v4, v5, v4, vcc")
    I(f"ds_read_b128 v[{dst}:{dst+3}], v4")
    I("s_waitcnt lgkmcnt(0)")
def mfma8(tb, afr, outfn):
    for e in range(8):
        d = outfn(e)
        I(f"v_mfma_f32_16x16x32_bf16 v[{d}:{d+3}], v[{afr}:{afr+3}], v[{tb+4*e}:{tb+4*e+3}], 0")
def red_write(dfn, sreg_off):
    I(f"v_lshlrev_b32 v4, 6, v{V_I}"); I(f"v_add_u32 v4, s{sreg_off}, v4")
    I("v_cmp_gt_u32 vcc, 16, v2"); I("s_and_saveexec_b64 s[8:9], vcc")
    for e in range(8):
        d = dfn(e)
        I(f"ds_write_b64 v4, v[{d}:{d+1}] offset:{LDS_RED + 8*e}")
    I("s_mov_b64 exec, s[8:9]")
    I("s_waitcnt lgkmcnt(0)")
def roll(tb): return lambda e: 12 if e == 0 else tb + 4 * (e - 1)
Ls2b = a.newlabel("L_s2b")
I("s_cmp_ge_u32 s3, 14"); I(f"s_cbranch_scc1 {Ls2b}")
I("s_lshl_b32 s6, s3, 6")
afrag(8, 6, LDS_AP, 1024)
mfma8(64, 8, roll(64))
I("s_lshl_b32 s6, s3, 10")
red_write(roll(64), 6)
a.label(Ls2b)
I("s_barrier")
Ls3 = a.newlabel("L_s3")
I("s_cmp_ge_u32 s3, 4"); I(f"s_cbranch_scc1 {Ls3}")
I("v_lshlrev_b32 v3, 2, v0")
for w in range(14): I(f"ds_read_b32 v{32+w}, v3 offset:{LDS_RED + 1024*w}")
I("s_waitcnt lgkmcnt(0)")
for w in range(1, 14): I(f"v_add_f32 v32, v32, v{32+w}")
I("v_mov_b32_dpp v33, v32 quad_perm:[2,3,2,3] row_mask:0xf bank_mask:0xf")
I("v_cvt_pk_bf16_f32 v32, v32, v33")
sanitize([32])
I("v_and_b32 v4, 1, v0"); I("v_lshlrev_b32 v4, 13, v4"); I("v_lshrrev_b32 v5, 1, v0"); I("v_lshlrev_b32 v5, 1, v5")
I("s_lshl_b32 s6, s2, 8"); I(f"s_add_u32 s6, s6, {WS_Q}"); I("v_add3_u32 v4, v4, v5, s6")
I("v_and_b32 v5, 2, v0"); I("v_cmp_eq_u32 vcc, 0, v5"); I("s_and_saveexec_b64 s[8:9], vcc")
I(f"global_store_dword v4, v32, {sp(P_WS)} sc1")
I("s_mov_b64 exec, s[8:9]")
stamp(3)
a.label(Ls3)
if os.environ.get("HEADONLY"): I("s_endpgm")
WO_T, WGU_T, WD_RAW = 32, 96, 64
def transpose8(rawbase, tbase):
    for e in range(8):
        for r in range(4):
            hi = rawbase + 4 * (2 * r + 1) + (e >> 1); lo = rawbase + 4 * (2 * r) + (e >> 1)
            I(f"v_perm_b32 v{tbase+4*e+r}, v{hi}, v{lo}, " + ("s95" if e % 2 == 0 else "s96"))
srd(52, P_WO, 4096 * 448 * 2)
srd(56, P_WD, 1792 * 448 * 2)
I("v_lshrrev_b32 v3, 3, v2"); I("s_lshl_b32 s4, s3, 5"); I("v_add_u32 v3, s4, v3")
I("v_mov_b32 v23, v3")
I("s_mov_b32 s5, 5376"); I("v_mul_lo_u32 v4, v3, s5")
I("v_and_b32 v5, 7, v2"); I("v_lshlrev_b32 v5, 4, v5")
I("s_lshl_b32 s6, s2, 7"); I("s_add_u32 s6, s6, 2048"); I("v_add3_u32 v4, v4, v5, s6")
I("v_mov_b32 v6, 0x40000000"); I("s_cmp_ge_u32 s2, 26"); I("s_cselect_b32 s6, 0x40000000, 0"); I("v_add_u32 v4, s6, v4")
for i in range(4):
    I(f"s_mov_b32 s61, {i*8*5376}")
    I(f"buffer_load_dwordx4 v[{32+4*i}:{35+4*i}], v4, s[44:47], s61 offen")
I("s_lshr_b32 s4, s2, 2"); I("s_and_b32 s5, s2, 3")
I(f"v_lshlrev_b32 v3, 3, v{V_G}"); I("s_lshl_b32 s6, s4, 9"); I("s_lshl_b32 s7, s3, 5"); I("s_add_u32 s6, s6, s7"); I("v_add_u32 v3, s6, v3")
I("s_movk_i32 s6, 896"); I("v_mul_lo_u32 v4, v3, s6")
I(f"v_lshlrev_b32 v6, 4, v{V_I}"); I("s_mul_i32 s6, s5, 224"); I("v_add3_u32 v4, v4, v6, s6")
I("v_mov_b32 v6, 0x40000000"); I(f"v_cmp_gt_u32 vcc, 14, v{V_I}"); I("v_cndmask_b32 v4, v6, v4, vcc")
I("s_mov_b32 s7, 3584")
for j in range(8):
    r = 96 + 4 * j
    if j * 896 <= 4095: I(f"buffer_load_dwordx4 v[{r}:{r+3}], v4, s[52:55], 0 offen offset:{j*896}")
    else: I(f"buffer_load_dwordx4 v[{r}:{r+3}], v4, s[52:55], s7 offen offset:{j*896-3584}")
Ls4 = a.newlabel("L_s4")
I("s_cmp_ge_u32 s2, 26"); I(f"s_cbranch_scc1 {Ls4}")
gemv(23, 8, LDS_A, 2048, 4)
I("s_waitcnt vmcnt(8)")
for i in range(4): gemv_mac(32 + 4 * i, i, 4)
r = treduce(ACCS, 5); r = treduce(r, 4); r = treduce(r, 3)
I("s_lshl_b32 s6, s3, 9"); I("v_lshlrev_b32 v3, 3, v2"); I("v_add_u32 v3, s6, v3")
I(f"ds_write_b64 v3, v[{r[0]}:{r[1]}] offset:{LDS_RED}")
I("s_waitcnt lgkmcnt(0)")
I("s_barrier")
Ls5 = a.newlabel("L_s5")
I("s_cmp_lg_u32 s3, 15"); I(f"s_cbranch_scc1 {Ls5}")
I("v_lshlrev_b32 v3, 3, v2")
for w in range(16): I(f"ds_read_b64 v[{32+2*w}:{33+2*w}], v3 offset:{LDS_RED + 512*w}")
I("s_waitcnt lgkmcnt(0)")
for w in range(1, 16):
    for k in range(2): I(f"v_add_f32 v{32+k}, v{32+k}, v{32+2*w+k}")
bf16r(32); bf16r(33)
I("v_lshrrev_b32 v4, 5, v2"); I("s_mov_b32 s6, 2688"); I("v_mul_lo_u32 v4, v4, s6")
I("v_bfe_u32 v5, v2, 3, 2"); I("v_lshlrev_b32 v5, 1, v5")
I("v_and_b32 v6, 7, v2"); I("v_lshlrev_b32 v6, 3, v6")
I("v_add3_u32 v4, v4, v5, v6")
I("s_lshl_b32 s6, s2, 6"); I("s_add_u32 s6, s6, 1024"); I("v_add_u32 v4, s6, v4"); I("v_lshlrev_b32 v4, 2, v4")
I(f"global_store_dwordx2 v4, v[32:33], {sp(P_WS)} offset:{WS_MOD} sc1")
I("s_waitcnt vmcnt(0)")
signal(C_A2, 4)
a.label(Ls5)
a.label(Ls4)
stamp(4)
I(f"v_lshlrev_b32 v3, 3, v{V_G}"); I("s_lshl_b32 s6, s3, 5"); I("v_add_u32 v3, s6, v3")
I("s_movk_i32 s6, 3584"); I("v_mul_lo_u32 v4, v3, s6")
I(f"v_and_b32 v5, 7, v{V_I}"); I("v_lshlrev_b32 v5, 4, v5"); I("s_lshl_b32 s6, s2, 7"); I("v_add3_u32 v4, v4, v5, s6")
I(f"v_cmp_gt_u32 vcc, 8, v{V_I}")
I(f"v_mov_b32 v5, s{P_WU}"); I(f"v_mov_b32 v6, s{P_WG}"); I("v_cndmask_b32 v8, v5, v6, vcc")
I(f"v_mov_b32 v5, s{P_WU+1}"); I(f"v_mov_b32 v6, s{P_WG+1}"); I("v_cndmask_b32 v9, v5, v6, vcc")
I("v_add_co_u32 v8, vcc, v8, v4"); I("v_addc_co_u32 v9, vcc, 0, v9, vcc")
I("s_mov_b32 s14, 0")
Lgu = a.newlabel("L_nogu")
I("s_cmp_ge_u32 s2, 28"); I(f"s_cbranch_scc1 {Lgu}")
I("s_cmp_ge_u32 s3, 14"); I(f"s_cbranch_scc1 {Lgu}")
I("s_mov_b32 s14, 1")
I("s_waitcnt vmcnt(0)")
for j in range(8):
    I(f"global_load_dwordx4 v[{64+4*j}:{67+4*j}], v[8:9], off")
    if j < 7:
        I("v_add_co_u32 v8, vcc, 3584, v8"); I("v_addc_co_u32 v9, vcc, 0, v9, vcc")
a.label(Lgu)
I("s_cmp_eq_u32 s14, 1");
Lw = a.newlabel("L_w"); Lw2 = a.newlabel("L_w2")
I(f"s_cbranch_scc1 {Lw}")
I("s_waitcnt vmcnt(0)")
a.label(Lw)
transpose8(96, WO_T)
I("s_waitcnt vmcnt(0)")
I("s_cmp_eq_u32 s14, 1"); I(f"s_cbranch_scc0 {Lw2}")
transpose8(64, WGU_T)
a.label(Lw2)
I("s_and_b32 s6, s3, 1"); I("s_lshl_b32 s6, s6, 5"); I("s_lshl_b32 s7, s2, 6"); I("s_add_u32 s6, s6, s7")
I(f"v_lshlrev_b32 v3, 3, v{V_G}"); I("v_add_u32 v3, s6, v3")
I("s_movk_i32 s6, 896"); I("v_mul_lo_u32 v4, v3, s6")
I("s_lshr_b32 s6, s3, 1"); I("s_lshl_b32 s6, s6, 8"); I(f"v_lshlrev_b32 v5, 4, v{V_I}"); I("v_add_u32 v5, s6, v5")
I("v_add_u32 v4, v4, v5")
I("v_mov_b32 v6, 0x40000000"); I("v_cmp_gt_u32 vcc, 896, v5"); I("v_cndmask_b32 v4, v6, v4, vcc")
def wdreg(j): return WD_RAW + 4 * j
I("s_mov_b32 s7, 3584")
for j in range(8):
    r = wdreg(j)
    if j * 896 <= 4095: I(f"buffer_load_dwordx4 v[{r}:{r+3}], v4, s[56:59], 0 offen offset:{j*896}")
    else: I(f"buffer_load_dwordx4 v[{r}:{r+3}], v4, s[56:59], s7 offen offset:{j*896-3584}")
stamp(5)
Lt1 = a.newlabel("L_t1")
I("s_cmp_lg_u32 s3, 0"); I(f"s_cbranch_scc1 {Lt1}")
poll(C_I, 32, 4, 8, "L_pq")
I("v_cmp_le_u32 vcc, 14, v2"); I("v_mov_b32 v5, 0"); I("v_mov_b32 v6, 98"); I("v_cndmask_b32 v5, v5, v6, vcc")
I("v_add_u32 v5, v5, v2"); I("s_mul_i32 s6, s4, 14"); I("v_add_u32 v5, s6, v5")
I("v_lshlrev_b32 v5, 3, v5"); I(f"v_add_u32 v5, {WS_PML}, v5")
I("v_cmp_gt_u32 vcc, 28, v2"); I("s_and_saveexec_b64 s[10:11], vcc")
validated_loads(lambda: I(f"global_load_dwordx2 v[6:7], v5, {sp(P_WS)} sc1"), [6, 7], 8, "L_pml", sleep=1)
I("s_mov_b64 exec, s[10:11]")
stamp(6)
a.label(Lt1)
I("s_barrier")
I("s_lshr_b32 s6, s3, 3"); I("s_lshl_b32 s6, s6, 4")
I("s_lshr_b32 s7, s3, 2"); I("s_and_b32 s7, s7, 1")
I("s_add_u32 s6, s6, s7"); I("s_lshl_b32 s7, s4, 1"); I("s_add_u32 s6, s6, s7")
I("s_mul_i32 s6, s6, 7")
I("s_lshl_b32 s7, s6, 10"); I(f"s_add_u32 s7, s7, {WS_PO}")
I("v_and_b32 v3, 255, v0"); I("v_lshlrev_b32 v3, 2, v3"); I("v_add_u32 v3, s7, v3")
I(f"s_add_u32 s12, s{P_WS}, 4096"); I(f"s_addc_u32 s13, s{P_WS+1}, 0")
I("s_lshl_b32 s7, s6, 3"); I(f"s_add_u32 s7, s7, {WS_PML}"); I("v_mov_b32 v4, s7")
def t1loads():
    for s_ in range(7):
        if s_ < 4: I(f"global_load_dword v{5+s_}, v3, {sp(P_WS)} offset:{1024*s_} sc1")
        else: I(f"global_load_dword v{5+s_}, v3, s[12:13] offset:{1024*(s_-4)} sc1")
    I(f"global_load_dwordx4 v[12:15], v4, {sp(P_WS)} sc1")
    I(f"global_load_dwordx4 v[16:19], v4, {sp(P_WS)} offset:16 sc1")
    I(f"global_load_dwordx4 v[20:23], v4, {sp(P_WS)} offset:32 sc1")
    I(f"global_load_dwordx2 v[24:25], v4, {sp(P_WS)} offset:48 sc1")
validated_loads(t1loads, list(range(5, 25 + 1)), 1, "L_po")
mreg = [12 + 2 * k for k in range(7)]; lreg = [13 + 2 * k for k in range(7)]
I("v_max3_f32 v1, v12, v14, v16"); I("v_max3_f32 v1, v1, v18, v20"); I("v_max3_f32 v1, v1, v22, v24")
for s_ in range(7): I(f"v_sub_f32 v{mreg[s_]}, v{mreg[s_]}, v1")
for s_ in range(7): I(f"v_exp_f32 v{mreg[s_]}, v{mreg[s_]}")
I(f"v_mul_f32 v1, v{mreg[0]}, v{lreg[0]}")
for s_ in range(1, 7): I(f"v_fmac_f32 v1, v{mreg[s_]}, v{lreg[s_]}")
I(f"v_mul_f32 v8, v{mreg[0]}, v5" if False else f"v_mul_f32 v4, v{mreg[0]}, v5")
for s_ in range(1, 7): I(f"v_fmac_f32 v4, v{mreg[s_]}, v{5+s_}")
I("v_rcp_f32 v1, v1")
I("v_mul_f32 v8, v4, v1")
I("v_cvt_pk_bf16_f32 v8, v8, v8")
I("v_lshlrev_b32 v3, 1, v0")
I(f"ds_write_b16 v3, v8 offset:{LDS_AP}")
I("s_waitcnt lgkmcnt(0)")
I("s_barrier")
def afrag(dst, k0reg_s, base, rowstride):
    I(f"v_mul_u32_u24 v4, {rowstride}, v{V_I}"); I(f"v_lshlrev_b32 v5, 4, v{V_G}"); I(f"v_add3_u32 v4, v4, v5, s{k0reg_s}")
    I(f"v_add_u32 v4, {base}, v4")
    I(f"v_mov_b32 v5, {LDS_ZERO}"); I(f"v_cmp_gt_u32 vcc, 2, v{V_I}"); I("v_cndmask_b32 v4, v5, v4, vcc")
    I(f"ds_read_b128 v[{dst}:{dst+3}], v4")
    I("s_waitcnt lgkmcnt(0)")
def mfma8(tb, afr, outfn):
    for e in range(8):
        d = outfn(e)
        I(f"v_mfma_f32_16x16x32_bf16 v[{d}:{d+3}], v[{afr}:{afr+3}], v[{tb+4*e}:{tb+4*e+3}], 0")
def red_write(dfn, sreg_off):
    I(f"v_lshlrev_b32 v4, 6, v{V_I}"); I(f"v_add_u32 v4, s{sreg_off}, v4")
    I("v_cmp_gt_u32 vcc, 16, v2"); I("s_and_saveexec_b64 s[8:9], vcc")
    for e in range(8):
        d = dfn(e)
        I(f"ds_write_b64 v4, v[{d}:{d+1}] offset:{LDS_RED + 8*e}")
    I("s_mov_b64 exec, s[8:9]")
    I("s_waitcnt lgkmcnt(0)")
I("s_lshl_b32 s6, s3, 6")
afrag(8, 6, LDS_AP, 1024)
def roll(tb): return lambda e: 12 if e == 0 else tb + 4 * (e - 1)
mfma8(WO_T, 8, roll(WO_T))
I("s_lshl_b32 s6, s3, 10")
red_write(roll(WO_T), 6)
I("s_barrier")
Lt2 = a.newlabel("L_t2")
I("s_cmp_ge_u32 s3, 4"); I(f"s_cbranch_scc1 {Lt2}")
I("v_lshlrev_b32 v3, 2, v0")
for w in range(16): I(f"ds_read_b32 v{32+w}, v3 offset:{LDS_RED + 1024*w}")
I("s_waitcnt lgkmcnt(0)")
for w in range(1, 16): I(f"v_add_f32 v32, v32, v{32+w}")
sanitize([32])
I("v_and_b32 v4, 1, v0"); I("v_mul_u32_u24 v4, 448, v4"); I("v_lshrrev_b32 v5, 1, v0")
I("s_mul_i32 s6, s4, 896"); I("s_mul_i32 s7, s5, 112"); I("s_add_u32 s6, s6, s7")
I("v_add3_u32 v4, v4, v5, s6"); I("v_lshlrev_b32 v4, 2, v4"); I(f"v_add_u32 v4, {WS_Y}, v4")
I("v_cmp_gt_u32 vcc, 112, v5"); I("s_and_saveexec_b64 s[8:9], vcc")
I(f"global_store_dword v4, v32, {sp(P_WS)} sc1")
I("s_mov_b64 exec, s[8:9]")
stamp(7)
a.label(Lt2)
I("s_cmp_ge_u32 s2, 28"); I("s_cbranch_scc1 L_end")
Lt3 = a.newlabel("L_t3")
I("s_cmp_lg_u32 s3, 15"); I(f"s_cbranch_scc1 {Lt3}")
poll(C_A2, 26, 4, 8, "L_pa2")
a.label(Lt3)
I("s_barrier")
Lt4 = a.newlabel("L_t4")
I("s_cmp_ge_u32 s3, 14"); I(f"s_cbranch_scc1 {Lt4}")
I(f"global_load_dword v16, v{V_K4}, {sp(P_WS)} offset:{WS_MOD+896*4} sc1")
I(f"v_add_u32 v4, {1344*4}, v{V_K4}")
I(f"global_load_dword v17, v4, {sp(P_WS)} offset:{WS_MOD} sc1")
I(f"global_load_dword v18, v4, {sp(P_WS)} offset:{WS_MOD+1792} sc1")
I("v_lshlrev_b32 v3, 2, v0"); I(f"v_add_u32 v3, {WS_Y}, v3")
I("v_add_u32 v4, 3584, v3"); I("v_add_u32 v5, 7168, v4"); I("v_add_u32 v6, 7168, v5"); I("v_add_u32 v7, 7168, v6")
def yloads():
    I(f"global_load_dword v8, v3, {sp(P_WS)} sc1")
    I(f"global_load_dword v9, v4, {sp(P_WS)} sc1"); I(f"global_load_dword v10, v4, {sp(P_WS)} offset:3584 sc1")
    I(f"global_load_dword v11, v5, {sp(P_WS)} sc1"); I(f"global_load_dword v12, v5, {sp(P_WS)} offset:3584 sc1")
    I(f"global_load_dword v13, v6, {sp(P_WS)} sc1"); I(f"global_load_dword v14, v6, {sp(P_WS)} offset:3584 sc1")
    I(f"global_load_dword v15, v7, {sp(P_WS)} sc1")
validated_loads(yloads, list(range(8, 16)), 19, "L_y")
stamp(8)
for kc in range(1, 8): I(f"v_add_f32 v8, v8, v{8+kc}")
bf16r(8)
I("v_mul_f32 v8, v16, v8"); bf16r(8)
I(f"v_add_f32 v{V_X2}, v{V_X}, v8"); bf16r(V_X2)
I("v_lshlrev_b32 v3, 2, v0")
I(f"ds_write_b32 v3, v{V_X2} offset:{LDS_X2}")
I("s_waitcnt lgkmcnt(0)")
a.label(Lt4)
I("s_barrier")
Lt5 = a.newlabel("L_t5")
I("s_cmp_ge_u32 s3, 14"); I(f"s_cbranch_scc1 {Lt5}")
I("s_cmp_ge_u32 s3, 7"); I("s_cselect_b32 s7, 1792, 0")
I("v_lshlrev_b32 v3, 2, v2"); I("v_add_u32 v3, s7, v3")
for i in range(7): I(f"ds_read_b32 v{8+i}, v3 offset:{LDS_X2 + 256*i}")
I("s_waitcnt lgkmcnt(0)")
mean, sd = ln_stats(list(range(8, 15)), 4)
layernorm_elem(15, V_X2, mean, sd, 16)
I("v_add_f32 v18, 1.0, v18"); bf16r(18)
I("v_mul_f32 v18, v15, v18"); bf16r(18)
I("v_add_f32 v18, v18, v17")
I("v_cvt_pk_bf16_f32 v18, v18, v18")
I(f"v_lshlrev_b32 v3, 1, v{V_AADDR}")
I(f"ds_write_b16 v3, v18 offset:{LDS_AP}")
I("s_waitcnt lgkmcnt(0)")
a.label(Lt5)
I("s_barrier")
Lt5b = a.newlabel("L_t5b")
I("s_cmp_ge_u32 s3, 14"); I(f"s_cbranch_scc1 {Lt5b}")
I("s_lshl_b32 s6, s3, 6")
afrag(8, 6, LDS_AP, 1024)
mfma8(WGU_T, 8, roll(WGU_T))
I("s_lshl_b32 s6, s3, 10")
red_write(roll(WGU_T), 6)
a.label(Lt5b)
I("s_barrier")
Lt6 = a.newlabel("L_t6")
I("s_cmp_ge_u32 s3, 2"); I(f"s_cbranch_scc1 {Lt6}")
I("v_lshlrev_b32 v3, 2, v0")
for w in range(14):
    I(f"ds_read_b32 v{32+w}, v3 offset:{LDS_RED + 1024*w}")
    I(f"ds_read_b32 v{48+w}, v3 offset:{LDS_RED + 1024*w + 512}")
I("s_waitcnt lgkmcnt(0)")
for w in range(1, 14):
    I(f"v_add_f32 v32, v32, v{32+w}"); I(f"v_add_f32 v48, v48, v{48+w}")
g, u = 32, 48
bf16r(g); bf16r(u)
I(f"v_mul_f32 v4, v{g}, v{g}")
I(f"v_mov_b32 v5, {f32(0.044715)}")
I("v_fma_f32 v4, v4, v5, 1.0")
I(f"v_mul_f32 v4, v4, v{g}")
I(f"v_mul_f32 v4, {f32(2 * 0.7978845608028654 * LOG2E)}, v4")
I("v_exp_f32 v4, v4")
I("v_add_f32 v4, 1.0, v4")
I("v_rcp_f32 v4, v4")
I("v_fma_f32 v4, v4, -2.0, 1.0")
I("v_add_f32 v4, 1.0, v4")
I(f"v_mul_f32 v4, v4, v{g}")
I("v_mul_f32 v4, 0.5, v4"); bf16r(4)
I(f"v_mul_f32 v4, v4, v{u}")
I("v_cvt_pk_bf16_f32 v4, v4, v4")
I("v_and_b32 v5, 1, v0"); I("v_lshlrev_b32 v5, 7, v5"); I("v_and_b32 v6, 0xfe, v0"); I("v_add_u32 v5, v5, v6")
I(f"ds_write_b16 v5, v4 offset:{LDS_A2}")
I("s_waitcnt lgkmcnt(0)")
a.label(Lt6)
for e in range(8):
    for r in range(4):
        I(f"v_perm_b32 v{32+4*e+r}, v{wdreg(2*r+1)+(e>>1)}, v{wdreg(2*r)+(e>>1)}, " + ("s95" if e % 2 == 0 else "s96"))
I("s_barrier")
Lt6b = a.newlabel("L_t6b")
I("s_cmp_ge_u32 s3, 8"); I(f"s_cbranch_scc1 {Lt6b}")
I("s_and_b32 s6, s3, 1"); I("s_lshl_b32 s6, s6, 6")
afrag(8, 6, LDS_A2, 128)
mfma8(32, 8, roll(32))
I("s_lshl_b32 s6, s3, 10")
red_write(roll(32), 6)
a.label(Lt6b)
I("s_barrier")
I("v_lshrrev_b32 v4, 8, v0"); I("v_lshlrev_b32 v4, 11, v4"); I("v_and_b32 v5, 255, v0"); I("v_lshlrev_b32 v6, 2, v5"); I("v_add_u32 v4, v4, v6")
I(f"ds_read_b32 v8, v4 offset:{LDS_RED}"); I(f"ds_read_b32 v9, v4 offset:{LDS_RED+1024}")
I("v_lshrrev_b32 v4, 8, v0"); I("v_lshlrev_b32 v4, 7, v4"); I("v_lshrrev_b32 v5, 1, v5"); I("v_add_u32 v4, v4, v5")
I("v_and_b32 v5, 1, v0"); I("v_mul_u32_u24 v5, 448, v5"); I("v_add_u32 v5, v5, v4")
I("s_mul_i32 s6, s2, 896"); I("v_add_u32 v5, s6, v5"); I("v_lshlrev_b32 v5, 2, v5"); I(f"v_add_u32 v5, {WS_Z}, v5")
I("s_waitcnt lgkmcnt(0)")
I("v_add_f32 v8, v8, v9")
sanitize([8])
I("v_cmp_gt_u32 vcc, 448, v4"); I("s_and_saveexec_b64 s[8:9], vcc")
I(f"global_store_dword v5, v8, {sp(P_WS)} sc1")
I("s_mov_b64 exec, s[8:9]")
stamp(9)
I("s_cmp_lg_u32 s3, 0"); I("s_cbranch_scc1 L_end")
I(f"v_and_b32 v4, 1, v{V_G}"); I("v_mul_u32_u24 v4, 448, v4")
I(f"s_lshl_b32 s6, s2, 4"); I(f"v_add3_u32 v4, v4, v{V_I}, s6")
I("v_lshlrev_b32 v5, 2, v4")
I(f"v_add_u32 v6, {WS_Z}, v5")
I(f"v_and_b32 v7, 1, v{V_G}"); I("v_mul_u32_u24 v7, 2240, v7"); I("s_movk_i32 s6, 2240"); I("v_add3_u32 v7, v7, v4, s6"); I("v_lshlrev_b32 v7, 2, v7")
I(f"global_load_dword v92, v7, {sp(P_WS)} offset:{WS_MOD} sc1")
I(f"ds_read_b32 v93, v5 offset:{LDS_X2}")
def zloads():
    I("v_mov_b32 v7, v6")
    for p in range(28):
        I(f"global_load_dword v{32+p}, v7, {sp(P_WS)} sc1")
        if p < 27: I("v_add_u32 v7, 3584, v7")
validated_loads(zloads, list(range(32, 60)), 8, "L_z")
I("s_waitcnt lgkmcnt(0)")
for p in range(1, 28): I(f"v_add_f32 v32, v32, v{32+p}")
bf16r(32)
I("v_mul_f32 v32, v92, v32"); bf16r(32)
I("v_add_f32 v32, v93, v32")
I("v_cvt_pk_bf16_f32 v32, v32, v32")
srd(44, P_OUT, 1792)
I("v_lshlrev_b32 v4, 1, v4")
I("v_cmp_gt_u32 vcc, 32, v2")
I("s_and_saveexec_b64 s[8:9], vcc")
I("buffer_store_short v32, v4, s[44:47], 0 offen")
I("s_mov_b64 exec, -1")
stamp(10)
stamp_flush(11)
a.label("L_end")
I("s_endpgm")
a.raw('.section .rodata,"a"'); a.raw(".p2align 6"); a.raw(f".amdhsa_kernel {NAME}")
a.raw("  .amdhsa_next_free_vgpr 128"); a.raw("  .amdhsa_next_free_sgpr 100"); a.raw("  .amdhsa_accum_offset 128")
a.raw("  .amdhsa_group_segment_fixed_size 0"); a.raw("  .amdhsa_kernarg_size 112"); a.raw("  .amdhsa_user_sgpr_count 2")
a.raw("  .amdhsa_user_sgpr_kernarg_segment_ptr 1"); a.raw("  .amdhsa_system_sgpr_workgroup_id_x 1"); a.raw(".end_amdhsa_kernel")
out = sys.argv[1] if len(sys.argv) > 1 else "adaLN_cond__mha_block_cached__geglu_ffn__decode.s"
open(out, "w").write(a.text())
print("wrote", out, len(a.lines), "lines")
```
